```python
import torch

def _softmax(x, axis=-1):
    return torch.softmax(x, dim=axis)
def _gelu(x):
    return torch.nn.functional.gelu(x, approximate="tanh")
def _silu(x):
    return torch.nn.functional.silu(x)
def _sigmoid(x):
    return torch.sigmoid(x)
def _layernorm(x, axis=-1, eps=1e-5):
    m = x.mean(dim=axis, keepdim=True)
    v = x.var(dim=axis, keepdim=True, unbiased=False)
    return (x - m) / torch.sqrt(v + eps)
def _scatter_add(tgt, idx, src, axis=0):
    return tgt.clone().index_add_(axis, idx, src)
def _segment_sum(src, seg, n):
    out = torch.zeros((n,) + src.shape[1:], dtype=src.dtype)
    return out.index_add_(0, seg, src)
def _pad(x, pw):
    flat = tuple(v for pair in reversed(pw) for v in pair)
    return torch.nn.functional.pad(x, flat)

kernel_name = 'concat_heads__spectral_fnet__sliding_local_dilated__prompt'

def setup_inputs():

    _w = (lambda a: (lambda t: t.to(torch.bfloat16) if t.is_floating_point() else t)(torch.as_tensor(a)))
    def _A_setup():
        B, S, D = 1, 2048, 640
        ns = torch.arange(S)[:, None] * torch.arange(S)[None, :]
        nd = torch.arange(D)[:, None] * torch.arange(D)[None, :]
        Ws_re = torch.cos(-2.0 * torch.pi * ns / S).to(float)
        Ws_im = torch.sin(-2.0 * torch.pi * ns / S).to(float)
        Wd_re = torch.cos(-2.0 * torch.pi * nd / D).to(float)
        Wd_im = torch.sin(-2.0 * torch.pi * nd / D).to(float)
        return {
            "x": _w((lambda *s: torch.randn(*s, dtype=torch.bfloat16) * 0.05)(B, S, D)),
            "dft_seq_re": _w(Ws_re),
            "dft_seq_im": _w(Ws_im),
            "dft_hid_re": _w(Wd_re),
            "dft_hid_im": _w(Wd_im),
        }
    _A_in = _A_setup()

    def _B_setup():
        B, S, D = 1, 2048, 640
        return {
            "x": _w((lambda *s: torch.randn(*s, dtype=torch.bfloat16) * 0.2)(B, S, D)),
            "wqkv": _w((lambda *s: torch.randn(*s, dtype=torch.bfloat16) * 0.8)(D, 3 * D)),
            "wo": _w((lambda *s: torch.randn(*s, dtype=torch.bfloat16) * 0.2)(D, D)),
        }
    _B_in = _B_setup()

    return {
        "A_x": _A_in["x"],
        "A_dft_seq_re": _A_in["dft_seq_re"],
        "A_dft_seq_im": _A_in["dft_seq_im"],
        "A_dft_hid_re": _A_in["dft_hid_re"],
        "A_dft_hid_im": _A_in["dft_hid_im"],
        "B_x": _B_in["x"],
        "B_wqkv": _B_in["wqkv"],
        "B_wo": _B_in["wo"],
    }

def reference(A_x, A_dft_seq_re, A_dft_seq_im, A_dft_hid_re, A_dft_hid_im, B_x, B_wqkv, B_wo):
    def _A_ref(x, dft_seq_re, dft_seq_im, dft_hid_re, dft_hid_im):
        a = torch.einsum("bsd,ed->bse", x, dft_hid_re)
        b = torch.einsum("bsd,ed->bse", x, dft_hid_im)
        y = torch.einsum("ts,bse->bte", dft_seq_re, a) - torch.einsum("ts,bse->bte", dft_seq_im, b)
        return y

    def _B_ref(x, wqkv, wo):
        B, S, D = x.shape
        H = 32; Dh = D // H
        W, dil = 8, 2
        qkv = (lambda x, *d: x.permute(*d))((x @ wqkv).reshape(B, S, 3, H, Dh), 2, 0, 3, 1, 4)
        q, k, v = qkv[0], qkv[1], qkv[2]
        scale = Dh ** -0.5
        pos = torch.arange(S)
        off = torch.arange(W) * dil
        idx = pos[:, None] - off[None, :]
        mask = idx >= 0
        idx_c = torch.where(mask, idx, 0).reshape(-1)
        kg = k[:, :, idx_c, :].reshape(B, H, S, W, Dh)
        vg = v[:, :, idx_c, :].reshape(B, H, S, W, Dh)
        logits = torch.einsum("bhsd,bhswd->bhsw", q, kg) * scale
        logits = torch.where(mask[None, None, :, :], logits, -1e9)
        attn = _softmax(logits, axis=-1)
        o = torch.einsum("bhsw,bhswd->bhsd", attn, vg)
        return (lambda x, *d: x.permute(*d))(o, 0, 2, 1, 3).reshape(B, S, D) @ wo

    a = _A_ref(A_x, A_dft_seq_re, A_dft_seq_im, A_dft_hid_re, A_dft_hid_im)
    b = _B_ref(B_x, B_wqkv, B_wo)
    return torch.concatenate([a, b], axis=-1)
```

```python
import re
TRANS = ("v_exp_f32","v_log_f32","v_rcp_f32","v_rsq_f32","v_sqrt_f32","v_sin_f32","v_cos_f32","v_rcp_iflag_f32")
def split_ops(s):
    out=[]; depth=0; cur=""
    for ch in s:
        if ch=="[": depth+=1
        if ch=="]": depth-=1
        if ch=="," and depth==0: out.append(cur.strip()); cur=""
        else: cur+=ch
    if cur.strip(): out.append(cur.strip())
    return out
REG = re.compile(r"^-?(?:abs\()?\|?([vas])(?:(\d+)|\[(\d+):(\d+)\])\|?\)?$")
def regs(tok):
    tok = tok.split()[0] if tok else tok
    if tok in ("vcc",): return {("s","vcc")}
    if tok in ("exec","exec_hi","exec_lo"): return {("s","exec")}
    if tok == "m0": return {("s","m0")}
    m = REG.match(tok)
    if not m: return set()
    k=m.group(1)
    if m.group(2) is not None: return {(k,int(m.group(2)))}
    return {(k,i) for i in range(int(m.group(3)), int(m.group(4))+1)}
class I:
    def __init__(s, text):
        s.text=text; t=text.split(";")[0].strip()
        s.label=None; s.op=None; s.defs=set(); s.uses=set(); s.kind="other"; s.states=1
        if not t or t.startswith("."): s.kind="dir"; s.states=0; return
        if t.endswith(":"): s.label=t[:-1]; s.kind="label"; s.states=0; return
        p=t.split(None,1); s.op=p[0]; ops=split_ops(p[1]) if len(p)>1 else []
        s.ops=ops; R=[regs(o) for o in ops]; op=s.op; U=lambda l: set().union(*l) if l else set()
        s.dpp = ("_dpp" in op) or ("quad_perm" in t) or ("row_" in t)
        if op=="s_nop": s.states=int(ops[0],0)+1; s.kind="nop"
        elif op.startswith("v_mfma"):
            s.kind="mfma"; s.defs=R[0]; s.a=R[1]; s.b=R[2]; s.c=R[3] if len(R)>3 else set(); s.uses=s.a|s.b|s.c
            s.passes = 8 if "32x32x16" in op else 4
            assert "32x32x16" in op or "16x16x32" in op
        elif op.startswith("v_"):
            s.kind="valu"
            if op.startswith("v_permlane") and "swap" in op: s.defs=R[0]|R[1]; s.uses=set(s.defs)
            elif op.startswith(("v_add_co","v_sub_co","v_addc_co","v_subb_co","v_subrev_co")): s.defs=R[0]|R[1]; s.uses=U(R[2:])
            else:
                s.defs=R[0]; s.uses=U(R[1:])
                if op.startswith(("v_fmac","v_dot2c","v_pk_fmac","v_writelane")) or s.dpp: s.uses|=R[0]
            s.trans = any(op.startswith(x) for x in TRANS)
            s.dot = op.startswith("v_dot")
        elif op.startswith("ds_"):
            s.kind="ds"
            if op.startswith(("ds_read","ds_bpermute","ds_permute","ds_swizzle")): s.defs=R[0]; s.uses=U(R[1:])
            else: s.uses=U(R)
        elif op.startswith(("buffer_","global_")):
            s.kind="vmem"; s.lds = bool(re.search(r"\blds\b", t)) or "_lds_" in op
            s.store = "store" in op or "atomic" in op
            if op in ("buffer_inv","buffer_wbl2"): pass
            elif s.lds: s.uses=U(R)|{("s","m0")}
            elif "load" in op: s.defs=R[0]; s.uses=U(R[1:])
            elif "atomic" in op and " sc0" in t and op.startswith("global"): s.defs=R[0]; s.uses=U(R[1:])
            else: s.uses=U(R)
            s.wide = s.store and ("x3" in op or "x4" in op)
            if s.wide: s.data = R[0] if op.startswith("buffer") else R[1]
        elif op.startswith("s_"):
            s.kind="salu"
            if op.startswith(("s_cmp","s_waitcnt","s_barrier","s_branch","s_cbranch","s_endpgm","s_setprio","s_sleep","s_bitcmp")): s.uses=U(R)
            else:
                s.defs=R[0]; s.uses=U(R[1:])
                if "saveexec" in op: s.defs=s.defs|{("s","exec")}
            if op.startswith(("s_load","s_memtime","s_memrealtime","s_atomic","s_buffer_load")): s.kind="smem"
        else: raise ValueError(text)
def vg(x): return {r for r in x if r[0] in "va"}
def sg(x): return {r for r in x if r[0]=="s"}
def need(p,c):
    n=0
    if p.kind=="valu":
        d=vg(p.defs); ds=sg(p.defs)
        if c.kind=="mfma" and d&c.uses: n=max(n,2)
        if c.kind=="valu":
            if d&c.uses:
                if c.op.startswith(("v_readlane","v_readfirstlane")): n=max(n,1)
                if c.dpp or c.op.startswith("v_permlane"): n=max(n,2)
                if p.trans and not c.trans: n=max(n,1)
                if "sdwa" in p.op or "op_sel" in p.text: n=max(n,1)
            if p.dot and d&(c.uses|c.defs):
                if not (c.op==p.op and not (d & (regs(c.ops[1])|regs(c.ops[2])))): n=max(n,3)
            if ds&c.uses: n=max(n,4 if c.op.startswith(("v_readlane","v_writelane")) else 2)
            if c.op.startswith("v_cndmask") and ("s","vcc") in ds: n=max(n,2)
        if p.dot and c.kind in("vmem","ds","mfma") and d&c.uses: n=max(n,3)
        if c.kind=="vmem" and ds&c.uses: n=max(n,5)
        if c.kind in("salu","smem") and ds&c.uses: n=max(n,1)
    if p.kind=="salu" and ("s","m0") in p.defs and c.kind=="vmem" and c.lds: n=max(n,1)
    if p.kind=="mfma":
        k={4:(6,8,3),8:(10,12,7)}[p.passes]
        if c.kind=="mfma":
            if p.defs&(c.a|c.b): n=max(n,k[1])
            if p.defs&c.c and not (p.defs==c.c and p.passes==c.passes): n=max(n,k[0])
        elif c.kind in("valu","vmem","ds"):
            if p.defs&(c.uses|c.defs): n=max(n,k[1])
            if c.kind=="valu" and p.c&c.defs: n=max(n,k[2])
    if p.kind=="vmem" and getattr(p,"wide",False):
        if p.data&c.defs: n=max(n,2 if c.kind in("valu","mfma") else 1)
    return n
def fix_hazards(lines, verbose=False):
    ins=[I(l) for l in lines]
    total=0
    while True:
        lab={x.label:i for i,x in enumerate(ins) if x.label}
        pred=[[] for _ in ins]
        for i,x in enumerate(ins):
            op=x.op or ""
            if op=="s_branch" or op.startswith("s_cbranch"): pred[lab[x.ops[0]]].append(i)
            if op not in("s_branch","s_endpgm") and i+1<len(ins): pred[i+1].append(i)
        fix=None
        for i,c in enumerate(ins):
            if c.kind in("dir","label","nop"): continue
            best=0; stack=[(j,0) for j in pred[i]]; seen={}
            while stack:
                j,d=stack.pop()
                if d>=20 or seen.get(j,99)<=d: continue
                seen[j]=d; p=ins[j]
                if p.kind not in("dir","label","nop"):
                    nn=need(p,c)
                    if nn-d>best: best=nn-d; why=p
                stack+=[(q,d+p.states) for q in pred[j]]
            if best>0: fix=(i,best,why); break
        if not fix: break
        i,b,why=fix
        if verbose: print(f"nop {b} before [{ins[i].text}] after [{why.text}]")
        total+=b
        ins.insert(i,I(f"s_nop {b-1}"))
    return [x.text for x in ins], total
class Asm:
    def __init__(s): s.L=[]
    def __call__(s,t):
        for l in t.split("\n"):
            l=l.strip()
            if l: s.L.append(l)
    def text(s, verbose=False):
        L,n=fix_hazards(s.L, verbose); s.nops=n
        return "\n".join(x if x.endswith(":") or x.startswith(".") else "    "+x for x in L)+"\n"
def vr(a,n=1): return f"v{a}" if n==1 else f"v[{a}:{a+n-1}]"
def sr(a,n=1): return f"s{a}" if n==1 else f"s[{a}:{a+n-1}]"
def kdesc(name, vgpr, sgpr=96):
    v=(vgpr+3)//4*4
    return f'''.section .rodata,"a"
.p2align 6
.amdhsa_kernel {name}
  .amdhsa_next_free_vgpr {v}
  .amdhsa_next_free_sgpr {sgpr}
  .amdhsa_accum_offset {v}
  .amdhsa_group_segment_fixed_size 0
  .amdhsa_kernarg_size 88
  .amdhsa_user_sgpr_count 2
  .amdhsa_user_sgpr_kernarg_segment_ptr 1
  .amdhsa_system_sgpr_workgroup_id_x 1
.end_amdhsa_kernel
'''
```

```python
import sys, math, struct
from asmlib import *
NAME = "concat_heads__spectral_fnet__sliding_local_dilated__prompt"
OWS = 2621440
OOB = 0x40000000
def f32(x): return "0x%08x" % struct.unpack("<I", struct.pack("<f", x))[0]
def srd(a, d, base, size, add=0):
    if add:
        a(f"s_add_u32 s{d}, s{base}, {add}\ns_addc_u32 s{d+1}, s{base+1}, 0")
    else:
        a(f"s_mov_b32 s{d}, s{base}\ns_mov_b32 s{d+1}, s{base+1}")
    a(f"s_mov_b32 s{d+2}, {size}\ns_mov_b32 s{d+3}, 0x20000")
M32 = "v_mfma_f32_32x32x16_bf16"; M16 = "v_mfma_f32_16x16x32_bf16"
SEL_LO, SEL_HI = "0x05040100", "0x07060302"

def head(a, name):
    a(f".globl {name}\n.p2align 8\n.type {name},@function\n{name}:")

def k2(a):
    head(a, "k2_kernel")
    a("""s_cmp_ge_u32 s2, 240
    s_cbranch_scc1 K2_END
    s_load_dwordx4 s[4:7], s[0:1], 8
    s_load_dwordx4 s[8:11], s[0:1], 56
    s_load_dwordx2 s[12:13], s[0:1], 80
    v_lshrrev_b32 v1, 6, v0
    v_and_b32 v0, 63, v0
    s_and_b32 s14, s2, 7
    s_lshr_b32 s15, s2, 3
    v_readfirstlane_b32 s16, v1
    s_cmp_ge_u32 s15, 20
    s_cbranch_scc1 A2""")
    b2(a)
    a2(a)
    a("K2_END:\ns_endpgm")

def b2(a):
    OF, ACC, WF = 64, 16, 224
    a(f"""s_mul_i32 s17, s15, 52
    s_lshr_b32 s17, s17, 8
    s_mul_i32 s18, s17, 5
    s_sub_u32 s18, s15, s18
    s_lshr_b32 s19, s14, 1
    s_lshl_b32 s19, s19, 2
    s_add_u32 s17, s17, s19
    s_and_b32 s19, s14, 1
    s_mul_i32 s19, s19, 5
    s_add_u32 s18, s18, s19
    s_lshl_b32 s20, s17, 2
    s_add_u32 s20, s20, s16
    s_mul_i32 s20, s20, 40960
    v_lshlrev_b32 v2, 4, v0
    v_lshrrev_b32 v4, 3, v0
    v_mul_u32_u24 v3, 1280, v4
    v_and_b32 v5, 7, v0
    v_lshrrev_b32 v6, 2, v0
    v_and_b32 v6, 4, v6
    v_xor_b32 v6, v5, v6
    v_lshl_add_u32 v3, v6, 4, v3
    s_mul_i32 s21, s16, 20480
    s_lshl_b32 s19, s18, 7
    s_add_u32 s21, s21, s19
    s_add_u32 s22, s21, 9216
    s_lshl_b32 s23, s16, 11
    s_waitcnt lgkmcnt(0)""")
    srd(a, 24, 8, 819200); srd(a, 28, 12, OWS); srd(a, 32, 10, 5242880)
    for st in range(10):
        a(f"s_add_u32 m0, s23, {8192*st}")
        if st: a("s_add_u32 s21, s21, 81920\ns_add_u32 s22, s22, 81920\ns_add_u32 s20, s20, 4096")
        a("buffer_load_dwordx4 v3, s[24:27], s21 offen lds")
        a("buffer_load_dwordx4 v3, s[24:27], s22 offen offset:1024 lds")
        for q in range(4):
            a(f"buffer_load_dwordx4 {vr(OF+16*st+4*q,4)}, v2, s[28:31], s20 offen offset:{1024*q}")
    a(f"""v_lshrrev_b32 v7, 5, v0
    v_lshlrev_b32 v7, 10, v7
    v_bfe_u32 v8, v0, 2, 2
    v_lshl_add_u32 v7, v8, 7, v7
    v_lshrrev_b32 v8, 1, v8
    v_lshl_add_u32 v7, v8, 6, v7
    v_bfe_u32 v8, v0, 4, 1
    v_lshl_add_u32 v7, v8, 5, v7
    v_and_b32 v8, 3, v0
    v_lshl_add_u32 v7, v8, 3, v7
    v_xor_b32 v8, 64, v7""")
    a(f"""s_lshl_b32 s36, s16, 12
    s_add_u32 s36, s36, 81920
    v_and_b32 v12, 31, v0
    v_lshlrev_b32 v9, 7, v12
    v_and_b32 v13, 7, v0
    v_lshl_add_u32 v9, v13, 4, v9
    v_lshrrev_b32 v13, 5, v0
    v_lshl_add_u32 v9, v13, 3, v9
    v_add_u32 v9, s36, v9
    v_xor_b32 v10, v5, v4
    v_lshlrev_b32 v10, 4, v10
    v_lshl_add_u32 v10, v4, 7, v10
    v_add_u32 v10, s36, v10
    v_mul_u32_u24 v11, 5120, v4
    v_lshl_add_u32 v11, v5, 4, v11
    s_and_b32 s37, s17, 7
    s_lshl_b32 s37, s37, 2
    s_add_u32 s37, s37, s16
    s_mul_i32 s37, s37, {32*5120}
    s_lshr_b32 s38, s17, 3
    s_mul_i32 s38, s38, 2560
    s_add_u32 s37, s37, s38
    s_lshl_b32 s38, s18, 7
    s_add_u32 s37, s37, s38
    s_add_u32 s37, s37, 1280""")
    for st in range(10):
        a(f"s_waitcnt vmcnt({54-6*st})\ns_barrier")
        if st == 8: a("v_add_u32 v7, 0x10000, v7\nv_add_u32 v8, 0x10000, v8")
        for q in range(4):
            off = (2048*(4*st+q)) & 0xffff
            for ct in range(2):
                for rho in range(2):
                    a(f"ds_read_b64_tr_b16 {vr(WF+8*q+4*ct+2*rho,2)}, v{7+ct} offset:{off+512*rho}")
        for q in range(4):
            for ct in range(2):
                a(f"s_waitcnt lgkmcnt({14-4*q-2*ct})")
                c = "0" if (st == 0 and q == 0) else vr(ACC+16*ct,16)
                a(f"{M32} {vr(ACC+16*ct,16)}, {vr(WF+8*q+4*ct,4)}, {vr(OF+16*st+4*q,4)}, {c}")
    T = 64
    for ct in range(2):
        for j in range(4):
            r = ACC+16*ct+4*j; t = T+2*(4*ct+j)
            a(f"v_cvt_pk_bf16_f32 v{t}, v{r}, v{r+1}\nv_cvt_pk_bf16_f32 v{t+1}, v{r+2}, v{r+3}")
            if ct or j: a(f"v_xor_b32 v12, {16*(4*ct+j)}, v9")
            a(f"ds_write_b64 {'v12' if (ct or j) else 'v9'}, {vr(t,2)}")
    a("s_waitcnt lgkmcnt(0)")
    for q in range(4): a(f"ds_read_b128 {vr(96+4*q,4)}, v10 offset:{1024*q}")
    for q in range(4):
        a(f"s_waitcnt lgkmcnt({3-q})")
        a(f"buffer_store_dwordx4 {vr(96+4*q,4)}, v11, s[32:35], s37 offen")
        if q < 3: a(f"s_add_u32 s37, s37, {8*5120}")
    a("s_endpgm")

def a2(a):
    GA, GB, ACC, RAW, F = 16, 48, 80, 144, 176
    a(f"""A2:
    s_sub_u32 s15, s15, 20
    s_cmp_ge_u32 s15, 5
    s_cselect_b32 s17, 1, 0
    s_cselect_b32 s18, 5, 0
    s_sub_u32 s18, s15, s18
    s_lshl_b32 s14, s14, 1
    s_add_u32 s17, s17, s14
    v_lshrrev_b32 v4, 3, v0
    v_and_b32 v5, 7, v0
    v_lshrrev_b32 v6, 4, v0
    v_xor_b32 v2, v5, v6
    v_lshlrev_b32 v2, 4, v2
    v_lshl_add_u32 v2, v4, 17, v2
    v_xor_b32 v3, 64, v2
    v_add_u32 v3, 0x100000, v3
    s_lshl_b32 s19, s16, 21
    s_lshl_b32 s20, s17, 12
    s_add_u32 s20, s20, s19
    s_lshl_b32 s23, s16, 11
    s_lshl_b32 s21, s18, 2
    s_add_u32 s21, s21, s16
    s_lshl_b32 s21, s21, 5
    v_and_b32 v7, 31, v0
    v_add_u32 v8, s21, v7
    v_sub_u32 v9, 640, v8
    v_min_u32 v8, v8, v9
    s_movk_i32 s22, 160
    v_cmp_lt_u32 vcc, s22, v8
    v_sub_u32 v9, 480, v8
    v_cndmask_b32 v9, v8, v9, vcc
    v_add_u32 v10, 320, v9
    v_cmp_eq_u32 vcc, s22, v8
    v_mov_b32 v11, 320
    v_mov_b32 v12, 480
    v_cndmask_b32 v9, v9, v11, vcc
    v_cndmask_b32 v10, v10, v12, vcc
    v_lshrrev_b32 v12, 5, v0
    v_mul_u32_u24 v13, 81920, v12
    v_lshl_add_u32 v9, v9, 4, v13
    v_lshl_add_u32 v10, v10, 4, v13
    v_cmp_eq_u32 vcc, 0, v8
    v_cmp_eq_u32 s[40:41], v11, v8
    s_or_b64 vcc, vcc, s[40:41]
    v_mov_b32 v13, {OOB}
    v_cndmask_b32 v10, v10, v13, vcc
    s_cmp_ge_u32 s21, 320
    s_cselect_b32 s42, 0x80008000, 0
    s_mul_i32 s22, s17, 163840
    s_waitcnt lgkmcnt(0)""")
    srd(a, 24, 4, 8388608); srd(a, 28, 6, 8388608); srd(a, 32, 10, 5242880); srd(a, 36, 12, OWS, add=OWS)
    def dft(reg, soff):
        for q in range(2):
            a(f"s_add_u32 m0, s23, {8192*(reg+q)}")
            a(f"buffer_load_dwordx4 v2, s[{24+4*q}:{27+4*q}], {soff} offen lds")
            a(f"s_add_u32 m0, s23, {8192*(reg+q)+1024}")
            a(f"buffer_load_dwordx4 v3, s[{24+4*q}:{27+4*q}], {soff} offen lds")
    dft(0, "s20")
    a("s_cmp_lg_u32 s17, 0\ns_cbranch_scc1 A2_G")
    a("s_add_u32 s20, s19, 65536")
    dft(2, "s20")
    a("A2_G:")
    for k in range(8):
        a(f"buffer_load_dwordx4 {vr(GA+4*k,4)}, v9, s[36:39], s22 offen")
        a(f"buffer_load_dwordx4 {vr(GB+4*k,4)}, v10, s[36:39], s22 offen")
        if k < 7: a("s_add_u32 s22, s22, 10240")
    a(f"""s_cmp_lg_u32 s17, 0
    s_cselect_b32 s43, 1, 2
    s_cselect_b32 s44, 0, 24576
    s_cselect_b32 s45, 0x80008000, 0
    s_cselect_b32 s46, 1.0, 0
    s_cselect_b32 s47, -1.0, 0
    s_lshl_b32 s43, s43, 13
    s_mov_b32 s48, {SEL_LO}
    s_mov_b32 s49, {SEL_HI}
    v_bfe_u32 v13, v0, 1, 3
    v_lshlrev_b32 v14, 2, v12
    v_xor_b32 v13, v13, v14
    v_lshlrev_b32 v13, 4, v13
    v_lshl_add_u32 v13, v7, 7, v13
    v_lshlrev_b32 v9, 8, v7
    v_and_b32 v14, 15, v0
    v_lshlrev_b32 v15, 4, v14
    s_lshl_b32 s50, s16, 6
    v_xor_b32 v15, s50, v15
    v_add_u32 v9, v9, v15
    v_lshl_add_u32 v9, v12, 3, v9
    v_add_u32 v9, 0x8000, v9
    v_xor_b32 v10, v14, v6
    v_lshlrev_b32 v10, 4, v10
    v_lshl_add_u32 v10, v6, 8, v10
    s_lshl_b32 s50, s16, 13
    s_add_u32 s50, s50, 0x8000
    v_add_u32 v10, s50, v10
    s_sub_u32 s50, 2048, s17
    s_cmp_lg_u32 s17, 0
    s_cselect_b32 s50, s50, 16
    s_cselect_b32 s51, -32, 32
    s_cmp_ge_u32 s16, 2
    s_cselect_b32 s50, s50, s17
    s_cselect_b32 s51, s51, 32
    s_and_b32 s52, s16, 1
    s_lshl_b32 s52, s52, 5
    v_add_u32 v11, s52, v6
    v_mul_i32_i24 v11, s51, v11
    v_add_u32 v11, s50, v11
    v_mul_u32_u24 v11, 2560, v11
    v_lshl_add_u32 v11, v14, 4, v11
    s_mul_i32 s51, s51, 10240
    s_lshl_b32 s52, s18, 8
    s_cmp_lg_u32 s17, 0
    s_cbranch_scc1 A2_GO
    s_waitcnt vmcnt(0)""")
    for r in range(32):
        a(f"v_xor_b32 v{GB+r}, s42, v{GB+r}")
        a(f"v_perm_b32 v14, v{GB+r}, v{GA+r}, s49")
        a(f"v_perm_b32 v{GA+r}, v{GB+r}, v{GA+r}, s48")
        a(f"v_mov_b32 v{GB+r}, v14")
    a("s_mov_b32 s42, 0\nA2_GO:\ns_waitcnt vmcnt(16)\ns_barrier")
    def reads(step):
        kp, tau = step >> 1, step & 1; R = RAW + 16*(step & 1)
        if tau == 0:
            a(f"v_xor_b32 v2, {16*kp}, v13\nv_add_u32 v3, s43, v2\nv_add_u32 v8, s44, v2")
        a(f"ds_read_b128 {vr(R,4)}, v2 offset:{4096*tau}")
        a(f"ds_read_b128 {vr(R+4,4)}, v2 offset:{4096*tau+8192}")
        a(f"ds_read_b128 {vr(R+8,4)}, v3 offset:{4096*tau}")
        a(f"ds_read_b128 {vr(R+12,4)}, v8 offset:{4096*tau}")
    reads(0)
    for step in range(8):
        kp, tau = step >> 1, step & 1; R = RAW + 16*(step & 1)
        if step < 7: reads(step+1)
        if tau == 0:
            a(f"s_waitcnt vmcnt({12-4*kp})")
            for r in range(8): a(f"v_xor_b32 v{GB+8*kp+r}, s42, v{GB+8*kp+r}")
        a(f"s_waitcnt lgkmcnt({4 if step < 7 else 0})")
        for d in range(4):
            a(f"v_perm_b32 v{F+2*d}, v{R+4+d}, v{R+d}, s48\nv_perm_b32 v{F+2*d+1}, v{R+4+d}, v{R+d}, s49")
        for d in range(4): a(f"v_xor_b32 v{R+8+d}, s45, v{R+8+d}")
        for kk in range(2):
            c = "0" if (kp == 0 and kk == 0) else vr(ACC+16*tau,16)
            a(f"{M32} {vr(ACC+16*tau,16)}, {vr(GA+8*kp+4*kk,4)}, {vr(F+4*kk,4)}, {c}")
        for d in range(4):
            a(f"v_perm_b32 v{F+8+2*d}, v{R+12+d}, v{R+8+d}, s48\nv_perm_b32 v{F+8+2*d+1}, v{R+12+d}, v{R+8+d}, s49")
        for kk in range(2):
            c = "0" if (kp == 0 and kk == 0) else vr(ACC+32+16*tau,16)
            a(f"{M32} {vr(ACC+32+16*tau,16)}, {vr(GB+8*kp+4*kk,4)}, {vr(F+8+4*kk,4)}, {c}")
    for tau in range(2):
        for j in range(4):
            p = ACC+16*tau+4*j; q = p+32; t = 16+12*((4*tau+j) & 1)
            for i in range(4): a(f"v_fma_f32 v{t+i}, s47, v{q+i}, v{p+i}")
            for i in range(4): a(f"v_fma_f32 v{t+4+i}, s46, v{p+i}, v{q+i}")
            a(f"v_cvt_pk_bf16_f32 v{t+8}, v{t}, v{t+1}\nv_cvt_pk_bf16_f32 v{t+9}, v{t+2}, v{t+3}")
            a(f"v_cvt_pk_bf16_f32 v{t+10}, v{t+4}, v{t+5}\nv_cvt_pk_bf16_f32 v{t+11}, v{t+6}, v{t+7}")
            a(f"v_xor_b32 v12, {16*j}, v9")
            a(f"ds_write_b64 v12, {vr(t+8,2)} offset:{8192*tau}")
            a(f"ds_write_b64 v12, {vr(t+10,2)} offset:{8192*tau+16384}")
    a("s_waitcnt lgkmcnt(0)\ns_barrier")
    for q in range(8):
        a(f"v_xor_b32 v12, {64*(q & 3)}, v10")
        a(f"ds_read_b128 {vr(48+4*q,4)}, v12 offset:{1024*q}")
    for q in range(8):
        a(f"s_waitcnt lgkmcnt({7-q})")
        a(f"buffer_store_dwordx4 {vr(48+4*q,4)}, v11, s[32:35], s52 offen")
        if q < 7: a("v_add_u32 v11, s51, v11")

def k1(a):
    head(a, "k1_kernel")
    a("""s_cmp_ge_u32 s2, 256
    s_cbranch_scc1 K1_END
    s_load_dwordx2 s[4:5], s[0:1], 0
    s_load_dwordx4 s[8:11], s[0:1], 24
    s_load_dwordx4 s[12:15], s[0:1], 40
    s_load_dwordx2 s[6:7], s[0:1], 80
    v_lshrrev_b32 v1, 6, v0
    v_and_b32 v0, 63, v0
    s_and_b32 s17, s2, 7
    s_lshr_b32 s18, s2, 3
    v_readfirstlane_b32 s16, v1
    s_cmp_ge_u32 s18, 28
    s_cbranch_scc1 A1""")
    b1(a)
    a1(a)
    a("K1_END:\ns_endpgm")

assert all((l*2185) >> 16 == l//30 for l in range(1920)) and all((c*26) >> 8 == c//10 for c in range(30))
assert all((q*205) >> 14 == q//80 for q in range(320))
STG = 90112
def b1(a):
    ACC, X0, W0 = 64, 104, 144
    a(f"""s_lshr_b32 s19, s17, 1
    s_mul_i32 s19, s19, 7
    s_lshr_b32 s24, s18, 2
    s_add_u32 s19, s19, s24
    s_and_b32 s24, s17, 1
    s_lshl_b32 s24, s24, 2
    s_and_b32 s18, s18, 3
    s_add_u32 s18, s18, s24
    s_cmp_ge_u32 s19, 14
    s_cselect_b32 s17, 1, 0
    s_cselect_b32 s24, 14, 0
    s_sub_u32 s19, s19, s24
    s_mul_i32 s19, s19, 73
    s_mul_i32 s25, s16, 5120
    s_cmp_ge_u32 s16, 2
    s_cbranch_scc1 B1_W""")
    a(f"""s_mul_i32 s24, s16, 40
    s_add_u32 s26, s24, s19
    s_lshl_b32 s26, s26, 1
    s_add_u32 s26, s26, s17
    s_mul_i32 s26, s26, 1280
    v_lshrrev_b32 v2, 3, v0
    v_mul_u32_u24 v2, 2560, v2
    v_add_u32 v2, s26, v2
    s_lshl_b32 s24, s16, 2
    v_lshrrev_b32 v3, 4, v0
    v_xor_b32 v3, s24, v3
    v_and_b32 v4, 7, v0
    v_xor_b32 v3, v3, v4
    v_lshl_add_u32 v10, v3, 4, v2""")
    for jj in range(1, 5):
        if jj & 1: a(f"v_xor_b32 v3, 64, v10\nv_add_u32 v{10+jj}, {20480*jj}, v3")
        else: a(f"v_add_u32 v{10+jj}, {20480*jj}, v10")
    a("s_movk_i32 s24, 128\ns_waitcnt lgkmcnt(0)")
    srd(a, 20, 12, OWS)
    a(f"""s_branch B1_GO
    B1_W:
    s_sub_u32 s24, s16, 2
    s_mul_i32 s24, s24, 320
    s_mul_i32 s26, s18, 160
    s_movk_i32 s27, 1120""")
    for jj in range(5):
        a(f"""v_add_u32 v2, s24, v0
        v_mul_u32_u24 v3, 2185, v2
        v_lshrrev_b32 v3, 16, v3
        v_mul_u32_u24 v4, 30, v3
        v_sub_u32 v4, v2, v4
        v_mul_u32_u24 v5, 26, v4
        v_lshrrev_b32 v5, 8, v5
        v_lshl_add_u32 v4, v4, 4, s26
        v_mad_u32_u24 v4, v5, s27, v4
        v_and_b32 v5, 35, v3
        v_bfe_u32 v6, v3, 2, 2
        v_lshl_add_u32 v5, v6, 3, v5
        v_bfe_u32 v6, v3, 4, 1
        v_lshl_add_u32 v5, v6, 2, v5
        v_mul_u32_u24 v5, 3840, v5
        v_add_u32 v{10+jj}, v4, v5""")
        if jj < 4: a("s_add_u32 s24, s24, 64")
    a("s_mov_b32 s24, 245760\ns_waitcnt lgkmcnt(0)")
    srd(a, 20, 14, 2457600)
    a("B1_GO:\ns_mov_b32 s26, 0\ns_mov_b32 s27, s25")
    def dma():
        for jj in range(5):
            a(f"s_add_u32 m0, s27, {1024*jj}")
            if jj == 4: a("s_add_u32 s27, s27, 40960")
            a(f"buffer_load_dwordx4 v{10+jj}, s[20:23], s26 offen lds")
        a("s_add_u32 s26, s26, s24")
    for st in range(3): dma()
    a(f"""v_and_b32 v2, 15, v0
    v_lshrrev_b32 v3, 4, v0
    v_lshrrev_b32 v4, 1, v2
    v_xor_b32 v4, v4, v3
    v_lshlrev_b32 v4, 4, v4
    v_lshl_add_u32 v15, v2, 7, v4
    v_xor_b32 v16, 64, v15
    v_lshrrev_b32 v4, 2, v0
    v_mul_u32_u24 v17, 480, v4
    v_and_b32 v5, 3, v0
    v_lshl_add_u32 v17, v5, 3, v17
    s_lshl_b32 s28, s16, 6
    v_add_u32 v17, s28, v17""")
    for r in range(40): a(f"v_mov_b32 v{ACC+r}, 0")
    srd(a, 32, 6, OWS)
    a(f"""s_mov_b32 s28, 0
    s_mov_b32 s29, 0
    B1_LOOP:
    s_cmp_lt_u32 s28, 8
    s_cbranch_scc1 B1_W10
    s_cmp_eq_u32 s28, 8
    s_cbranch_scc1 B1_W5
    s_waitcnt vmcnt(0)
    B1_W5:
    s_waitcnt vmcnt(5)
    B1_W10:
    v_add_u32 v18, s29, v15
    v_add_u32 v19, s29, v16
    v_add_u32 v20, s29, v17
    s_waitcnt vmcnt(10)
    s_barrier""")
    def rd(kk):
        for ct in range(2):
            for be in range(2):
                a(f"ds_read_b64_tr_b16 {vr(W0+8*kk+4*ct+2*be,2)}, v20 offset:{10240+(32*kk+16*be)*480+32*ct}")
        for t in range(5): a(f"ds_read_b128 {vr(X0+20*kk+4*t,4)}, v{18+kk} offset:{2048*t}")
    def mm(kk, base):
        for t in range(5):
            a(f"s_waitcnt lgkmcnt({base+4-t})")
            for ct in range(2):
                c = vr(ACC+20*ct+4*t,4)
                a(f"{M16} {c}, {vr(W0+8*kk+4*ct,4)}, {vr(X0+20*kk+4*t,4)}, {c}")
    rd(0)
    a("s_cmp_ge_u32 s28, 7\ns_cbranch_scc1 B1_NODMA")
    dma()
    a(f"s_add_u32 s30, s25, 163840\ns_cmp_eq_u32 s27, s30\ns_cselect_b32 s27, s25, s27")
    a("B1_NODMA:")
    mm(0, 0)
    rd(1)
    mm(1, 0)
    a(f"""s_add_u32 s29, s29, 40960
    s_cmp_eq_u32 s29, 163840
    s_cselect_b32 s29, 0, s29
    s_add_u32 s28, s28, 1
    s_cmp_lt_u32 s28, 10
    s_cbranch_scc1 B1_LOOP""")
    a(f"""v_mul_u32_u24 v21, 496, v2
    v_lshl_add_u32 v22, v3, 3, v21
    s_lshl_b32 s28, s16, 6
    s_add_u32 s28, s28, {STG}
    v_add_u32 v23, s28, v22
    v_mov_b32 v4, 0
    v_mov_b32 v5, 0""")
    for ct in range(2):
        if ct == 1: a("s_cmp_eq_u32 s16, 7\ns_cbranch_scc1 B1_PAD")
        for t in range(5):
            r = ACC+20*ct+4*t; d = X0+2*(5*ct+t)
            a(f"v_cvt_pk_bf16_f32 v{d}, v{r}, v{r+1}\nv_cvt_pk_bf16_f32 v{d+1}, v{r+2}, v{r+3}")
            a(f"ds_write_b64 v23, {vr(d,2)} offset:{7936*t+32*ct}")
    a("s_branch B1_ATT\nB1_PAD:")
    a("v_cmp_gt_u32 vcc, 32, v0\ns_and_saveexec_b64 s[36:37], vcc")
    for t in range(5): a(f"ds_write_b64 v23, v[4:5] offset:{7936*t+32}")
    a("s_mov_b64 exec, s[36:37]\nB1_ATT:")
    BP, BC, B0, ONE = 32, 36, 40, 44
    a(f"""s_and_b32 s28, s16, 3
    s_lshr_b32 s29, s16, 2
    s_mul_i32 s30, s28, 40
    s_mul_i32 s31, s29, 7936
    s_add_u32 s31, s31, {STG}
    s_add_u32 s30, s30, s31
    v_add_u32 v24, s30, v22
    v_add_u32 v27, {160-7936}, v24
    v_cmp_eq_u32 vcc, 0, v3
    v_add_u32 v6, s31, v21
    v_add_u32 v6, 480, v6
    v_add_u32 v7, 32, v24
    v_cndmask_b32 v25, v6, v7, vcc
    v_add_u32 v6, -7936, v6
    v_add_u32 v7, 32, v27
    v_cndmask_b32 v26, v6, v7, vcc
    v_lshrrev_b32 v6, 2, v0
    v_mul_u32_u24 v6, 496, v6
    v_and_b32 v7, 3, v0
    v_lshl_add_u32 v6, v7, 3, v6
    s_add_u32 s30, s30, {320-7936}
    v_add_u32 v28, s30, v6
    v_lshlrev_b32 v6, 2, v3
    v_sub_u32 v6, v6, v2
    v_mov_b32 v7, {f32(-1e30)}""")
    for i in range(4):
        a(f"v_cmp_le_i32 vcc, {9-i}, v6\nv_cndmask_b32 v{BP+i}, v7, v4, vcc")
        a(f"v_add_u32 v8, {7+i}, v6\nv_cmp_ge_u32 vcc, 7, v8\nv_cndmask_b32 v{BC+i}, v7, v4, vcc")
    a("s_cmp_eq_u32 s29, 0\ns_cselect_b64 vcc, -1, 0")
    for i in range(4): a(f"v_cndmask_b32 v{B0+i}, v{BP+i}, v7, vcc\nv_mov_b32 v{ONE+i}, 0x3f803f80")
    a(f"""s_lshl_b32 s30, s29, 4
    s_add_u32 s30, s30, s19
    v_add_u32 v29, s30, v2
    s_mul_i32 s31, s28, 5
    v_add_u32 v6, s31, v3
    v_lshrrev_b32 v8, 1, v6
    v_lshlrev_b32 v8, 9, v8
    v_and_b32 v6, 1, v6
    v_lshl_add_u32 v30, v6, 3, v8
    s_add_u32 s31, s31, 4
    s_lshr_b32 s30, s31, 1
    s_lshl_b32 s30, s30, 9
    s_and_b32 s31, s31, 1
    s_lshl_b32 s31, s31, 3
    s_add_u32 s30, s30, s31
    v_mov_b32 v8, {OOB}
    v_mov_b32 v31, s30
    v_cmp_eq_u32 vcc, 0, v3
    v_cndmask_b32 v31, v8, v31, vcc
    s_mul_i32 s38, s17, {32*40960}
    s_mul_i32 s30, s18, 5120
    s_add_u32 s38, s38, s30
    s_add_u32 s39, s19, 7
    s_cmp_eq_u32 s19, 0
    s_cselect_b32 s39, 0, s39
    s_mov_b32 s40, {f32(20**-0.5*math.log2(math.e))}
    s_mov_b32 s41, 40960
    s_movk_i32 s42, 1024
    s_waitcnt lgkmcnt(0)
    s_barrier""")
    def item_regs(j):
        b = 48 + 48*j
        return dict(Q=b, K=b+4, V=b+12, S=b+28, P=b+36, M=b+40, T=b+41, A0=b+42, A1=b+43, O=b+4, R=b+44)
    def st_load(j):
        r = item_regs(j); o = 15872*j
        a(f"ds_read_b64 {vr(r['Q'],2)}, v24 offset:{o}\nds_read_b64 {vr(r['Q']+2,2)}, v25 offset:{o}")
        for t in range(2):
            a(f"ds_read_b64 {vr(r['K']+4*t,2)}, v27 offset:{o+7936*t}\nds_read_b64 {vr(r['K']+4*t+2,2)}, v26 offset:{o+7936*t}")
    def st_loadv(j):
        r = item_regs(j); o = 15872*j
        for dt in range(2):
            for t in range(2): a(f"ds_read_b64_tr_b16 {vr(r['V']+4*dt+2*t,2)}, v28 offset:{o+7936*t+32*dt}")
    def st_qk(j):
        r = item_regs(j)
        a(f"{M16} {vr(r['S'],4)}, {vr(r['K'],4)}, {vr(r['Q'],4)}, {vr(B0 if j == 0 else BP,4)}")
        a(f"{M16} {vr(r['S']+4,4)}, {vr(r['K']+4,4)}, {vr(r['Q'],4)}, {vr(BC,4)}")
    def st_addr(j):
        r = item_regs(j)
        a(f"""v_add_u32 v6, {32*j}, v29
        v_lshrrev_b32 v8, 5, v6
        v_and_b32 v9, 31, v6
        v_lshlrev_b32 v9, 4, v9
        v_mad_u32_u24 v8, v8, s41, v9
        v_cmp_le_u32 vcc, s39, v6
        v_cmp_gt_u32 s[36:37], s42, v6
        s_and_b64 vcc, vcc, s[36:37]
        v_mov_b32 v9, {OOB}
        v_cndmask_b32 v8, v9, v8, vcc
        v_add_u32 v{r['A0']}, v8, v30
        v_add_u32 v{r['A1']}, v8, v31""")
    def steps_soft(j):
        r = item_regs(j); S, M, T, P = r['S'], r['M'], r['T'], r['P']
        L = [f"v_max3_f32 v{M}, v{S}, v{S+1}, v{S+2}", f"v_max3_f32 v{T}, v{S+3}, v{S+4}, v{S+5}", f"v_max3_f32 v{M}, v{M}, v{S+6}, v{S+7}",
             f"v_max_f32 v{M}, v{M}, v{T}", f"v_mov_b32 v{T}, v{M}", f"v_permlane16_swap_b32 v{M}, v{T}", f"v_max_f32 v{M}, v{M}, v{T}",
             f"v_mov_b32 v{T}, v{M}", f"v_permlane32_swap_b32 v{M}, v{T}", f"v_max_f32 v{M}, v{M}, v{T}", f"v_mul_f32 v{M}, s40, v{M}"]
        L += [f"v_fma_f32 v{S+i}, v{S+i}, s40, -v{M}" for i in range(8)]
        L += [f"v_exp_f32 v{S+i}, v{S+i}" for i in range(8)]
        L += [f"v_cvt_pk_bf16_f32 v{P+i}, v{S+2*i}, v{S+2*i+1}" for i in range(4)]
        return L
    def st_pv(j):
        r = item_regs(j)
        a(f"{M16} {vr(r['S'],4)}, {vr(ONE,4)}, {vr(r['P'],4)}, 0")
        for dt in range(2): a(f"{M16} {vr(r['O']+4*dt,4)}, {vr(r['V']+4*dt,4)}, {vr(r['P'],4)}, 0")
    def steps_out(j):
        r = item_regs(j); O, R = r['O'], r['R']
        L = [f"v_rcp_f32 v{r['M']}, v{r['S']}"]
        L += [f"v_mul_f32 v{O+i}, v{O+i}, v{r['M']}" for i in range(8)]
        L += [f"v_cvt_pk_bf16_f32 v{R+i}, v{O+2*i}, v{O+2*i+1}" for i in range(4)]
        L += [f"buffer_store_dwordx2 {vr(R,2)}, v{r['A0']}, s[32:35], s38 offen", f"buffer_store_dwordx2 {vr(R+2,2)}, v{r['A1']}, s[32:35], s38 offen"]
        return L
    def interleave(lists):
        for row in range(max(map(len, lists))):
            for l in lists:
                if row < len(l): a(l[row])
    def att(js):
        for j in js: st_load(j)
        for n, j in enumerate(js):
            st_addr(j)
            a(f"s_waitcnt lgkmcnt({min(15, 6*(len(js)-1-n) + 4*n)})")
            st_qk(j); st_loadv(j)
        interleave([steps_soft(j) for j in js])
        a("s_waitcnt lgkmcnt(0)")
        for j in js: st_pv(j)
        interleave([steps_out(j) for j in js])
    a("s_cmp_eq_u32 s29, 0\ns_cbranch_scc1 B1_ATT3")
    att([0, 1]); a("s_endpgm\nB1_ATT3:")
    att([0, 1, 2]); a("s_endpgm")

def a1(a):
    SLOT = 53248
    ACC, RAW, EV, DF = 64, 160, 176, 192
    HC, TW = 40, 48
    a(f"""A1:
    s_sub_u32 s18, s18, 28
    s_lshr_b32 s19, s18, 1
    s_lshl_b32 s17, s17, 1
    s_add_u32 s17, s17, s19
    s_and_b32 s18, s18, 1
    s_and_b32 s19, s16, 3
    v_lshrrev_b32 v2, 3, v0
    v_lshrrev_b32 v3, 4, v0
    v_and_b32 v4, 7, v0""")
    a(f"""s_lshl_b32 s24, s17, 2
    s_add_u32 s24, s24, s19
    s_mul_i32 s24, s24, 1280
    s_lshr_b32 s25, s16, 2
    s_lshl_b32 s25, s25, 7
    s_add_u32 s24, s24, s25
    v_mul_u32_u24 v5, 81920, v2
    v_add_u32 v5, s24, v5
    v_lshrrev_b32 v6, 5, v0
    v_lshlrev_b32 v6, 2, v6
    v_and_b32 v7, 1, v3
    v_lshl_add_u32 v6, v7, 1, v6
    v_xor_b32 v6, v6, v4
    v_lshl_add_u32 v10, v6, 4, v5
    v_xor_b32 v6, 80, v10
    v_add_u32 v11, {8*81920}, v6
    v_add_u32 v12, {16*81920}, v10
    v_add_u32 v13, {24*81920}, v6""")
    a(f"""v_mul_u32_u24 v5, 2560, v2
    v_xor_b32 v6, v3, v4
    v_lshl_add_u32 v14, v6, 4, v5
    s_mul_i32 s25, s18, {80*2560}
    v_add_u32 v14, s25, v14
    s_lshl_b32 s27, s16, 12
    s_waitcnt lgkmcnt(0)""")
    srd(a, 20, 4, OWS)
    a("s_and_b32 s24, s16, 1\ns_cmp_eq_u32 s24, 0\ns_cselect_b32 s28, s8, s10\ns_cselect_b32 s29, s9, s11\ns_mov_b32 s30, 819200\ns_mov_b32 s31, 0x20000")
    srd(a, 32, 6, OWS, add=OWS)
    def common_setup():
        a(f"""v_and_b32 v2, 15, v0
        v_bfe_u32 v5, v0, 3, 1
        v_bfe_u32 v6, v0, 2, 1
        v_xor_b32 v6, v6, v5
        v_lshl_add_u32 v5, v6, 2, v5
        v_and_b32 v6, 2, v0
        v_add_u32 v5, v5, v6
        v_lshlrev_b32 v6, 1, v3
        v_xor_b32 v5, v5, v6
        v_lshlrev_b32 v5, 4, v5
        v_lshl_add_u32 v17, v2, 7, v5
        s_lshl_b32 s24, s19, 12
        v_add_u32 v17, s24, v17
        v_xor_b32 v18, 16, v17
        v_lshrrev_b32 v5, 1, v2
        v_xor_b32 v5, v5, v3
        v_lshlrev_b32 v5, 4, v5
        v_lshl_add_u32 v19, v2, 7, v5
        v_xor_b32 v20, 64, v19
        s_mov_b32 s48, {SEL_LO}
        s_mov_b32 s49, {SEL_HI}""")
        a(f"v_lshlrev_b32 v5, 2, v3\nv_cmp_eq_u32 vcc, 0, v2\ns_mov_b32 s24, {f32(1/32)}")
        for be in range(2):
            for i in range(4):
                a(f"""v_add_u32 v6, {16*be+i}, v5
                v_mul_u32_u24 v6, v6, v2
                v_and_b32 v6, 31, v6
                v_cvt_f32_u32 v6, v6
                v_mul_f32 v6, s24, v6
                v_cos_f32 v{56+(i&1)}, v6
                v_sin_f32 v{58+(i&1)}, v6""")
                a(f"v_cndmask_b32 v{58+(i&1)}, v{58+(i&1)}, {'-1.0' if i&1 else '1.0'}, vcc".replace("v_cndmask_b32", "v_cndmask_b32_e64"))
                if i & 1:
                    a(f"v_cvt_pk_bf16_f32 v{HC+2*be+(i>>1)}, v56, v57\nv_cvt_pk_bf16_f32 v{HC+4+2*be+(i>>1)}, v58, v59")
    def group(G):
        nu = 3 if G == 0 else 2; u0 = 0 if G == 0 else 3; nd = 2 if G == 0 else 3; nv = 4+nd; n = f"A1{'AB'[G]}"
        if G == 0:
            a(f"""s_lshr_b32 s24, s16, 1
            s_mul_i32 s24, s24, {16*2560}
            v_add_u32 v14, s24, v14
            v_xor_b32 v15, 64, v14
            v_add_u32 v15, {8*2560}, v15
            s_lshl_b32 s36, s16, 11
            s_add_u32 s36, s36, 32768""")
            dl = [0, 1024]
        else:
            a(f"""s_lshr_b32 s24, s19, 1
            s_lshl_b32 s25, s24, 6
            v_xor_b32 v14, s25, v14
            s_mul_i32 s25, s24, {8*2560}
            s_add_u32 s25, s25, {32*2560}
            v_add_u32 v14, s25, v14
            v_add_u32 v15, {16*2560}, v14
            v_add_u32 v16, {32*2560}, v14
            s_and_b32 s36, s19, 1
            s_lshl_b32 s36, s36, 1
            s_add_u32 s36, s36, s24
            s_lshl_b32 s36, s36, 10
            s_add_u32 s36, s36, {32768+8192}""")
            dl = [0, 4096, 8192]
        a("s_mov_b32 s37, 0\ns_mov_b32 s38, 0\ns_mov_b32 s39, 0")
        def dma():
            a("s_add_u32 s40, s39, s27\ns_add_u32 s41, s39, s36")
            for jj in range(4):
                a(f"s_add_u32 m0, s40, {1024*jj}")
                if jj == 0: a(f"s_add_u32 s39, s39, {SLOT}")
                a(f"buffer_load_dwordx4 v{10+jj}, s[20:23], s37 offen lds")
            for q in range(nd):
                a(f"s_add_u32 m0, s41, {dl[q]}")
                if q == 0: a("s_add_u32 s37, s37, 256")
                a(f"buffer_load_dwordx4 v{14+q}, s[28:31], s38 offen lds")
            a("s_add_u32 s38, s38, 128")
        for st in range(3): dma()
        a("s_mov_b32 s39, 0")
        common_setup()
        a(f"s_mul_i32 s24, s18, 80\ns_add_u32 s24, s24, {16*u0}\ns_mov_b32 s25, {f32(1/640)}")
        for u in range(nu):
            a(f"""v_add_u32 v6, s24, v2
            v_cvt_f32_u32 v6, v6
            v_mul_f32 v6, s25, v6
            v_cos_f32 v{TW+2*u}, v6
            v_sin_f32 v{TW+2*u+1}, v6
            s_add_u32 s24, s24, 16""")
        for r in range(32*nu): a(f"v_mov_b32 v{ACC+r}, 0")
        if G == 0:
            a(f"""s_lshl_b32 s24, s18, 4
            s_add_u32 s24, s24, s16
            s_cmp_eq_u32 s24, 1
            s_cselect_b32 s46, 1, 0
            v_lshlrev_b32 v8, 2, v0
            v_add_u32 v8, {32768+2048}, v8
            v_mov_b32 v9, 0xbf803f80""")
        a(f"""s_mov_b32 s42, 0
        s_mov_b32 s43, 0
        {n}_LOOP:
        v_add_u32 v21, s43, v17
        v_add_u32 v22, s43, v18
        v_add_u32 v23, s43, v19
        v_add_u32 v24, s43, v20
        s_cmp_eq_u32 s42, 0
        s_cbranch_scc1 {n}_W2
        s_cmp_lt_u32 s42, 4
        s_cbranch_scc1 {n}_W1
        s_waitcnt vmcnt(0)
        {n}_W1:
        s_waitcnt vmcnt({nv})
        {n}_W2:
        s_waitcnt vmcnt({2*nv})""")
        if G == 0:
            a(f"""s_cmp_eq_u32 s46, 0
            s_cbranch_scc1 {n}_NOFIX
            v_add_u32 v25, s43, v8
            s_mov_b32 exec_hi, 0
            ds_write_b32 v25, v9
            s_mov_b32 exec_hi, -1
            s_waitcnt lgkmcnt(0)
            {n}_NOFIX:""")
        a("s_barrier")
        def rdx(kl):
            for mt in range(2):
                for b in range(2): a(f"ds_read_b128 {vr(RAW+8*mt+4*b,4)}, v{21+b} offset:{16384*kl+2048*mt}")
        def rdm(kl):
            for u in range(nu):
                for cs in range(2): a(f"ds_read_b128 {vr(DF+8*u+4*cs,4)}, v{23+kl} offset:{32768+4096*(u0+u)+2048*cs}")
        def perms():
            for mt in range(2):
                for d in range(4):
                    a(f"v_perm_b32 v{EV+8*mt+d}, v{RAW+8*mt+2*d+1}, v{RAW+8*mt+2*d}, s48")
                    a(f"v_perm_b32 v{EV+8*mt+4+d}, v{RAW+8*mt+2*d+1}, v{RAW+8*mt+2*d}, s49")
        def mm(after):
            for u in range(nu):
                for cs in range(2):
                    a(f"s_waitcnt lgkmcnt({after + 2*nu - 1 - 2*u - cs})")
                    for eo in range(2):
                        for mt in range(2):
                            c = vr(ACC+32*u+16*cs+8*eo+4*mt,4)
                            a(f"{M16} {c}, {vr(EV+8*mt+4*eo,4)}, {vr(DF+8*u+4*cs,4)}, {c}")
        rdx(0); rdm(0)
        a(f"s_sub_u32 s24, s42, 1\ns_cmp_ge_u32 s24, 2\ns_cbranch_scc1 {n}_NODMA")
        dma()
        a(f"{n}_NODMA:\ns_waitcnt lgkmcnt({2*nu})")
        perms(); rdx(1); mm(4)
        rdm(1)
        a(f"s_waitcnt lgkmcnt({2*nu})")
        perms(); mm(0)
        a(f"""s_add_u32 s43, s43, {SLOT}
        s_cmp_eq_u32 s43, {3*SLOT}
        s_cselect_b32 s43, 0, s43
        s_add_u32 s42, s42, 1
        s_cmp_lt_u32 s42, 5
        s_cbranch_scc1 {n}_LOOP""")
        a(f"""v_mul_u32_u24 v5, 20480, v3
        v_and_b32 v6, 1, v3
        v_lshl_add_u32 v5, v6, 3, v5
        v_lshrrev_b32 v6, 1, v3
        v_lshl_add_u32 v5, v6, 16, v5
        v_lshl_add_u32 v5, v2, 4, v5
        s_lshl_b32 s24, s19, 2
        v_add_u32 v5, s24, v5""")
        if G == 0: a("v_cmp_eq_u32 vcc, 0, v2\ns_cmp_eq_u32 s18, 0\ns_cselect_b64 s[44:45], vcc, 0")
        XB, Y = 160, 192
        for u in range(nu):
            A = ACC+32*u; c, s = TW+2*u, TW+2*u+1
            for e in range(8):
                Ec, Oc, Es, Os = A+e, A+8+e, A+16+e, A+24+e
                a(f"""v_mul_f32 v6, v{c}, v{Oc}
                v_mul_f32 v7, v{s}, v{Oc}
                v_fmac_f32 v6, v{s}, v{Os}
                v_fma_f32 v7, -v{c}, v{Os}, v7
                v_sub_f32 v{Oc}, v{Ec}, v6
                v_add_f32 v{Ec}, v{Ec}, v6""")
                if G == 0 and u == 0:
                    a(f"""v_sub_f32 v6, v7, v{Es}
                    v_add_f32 v7, v7, v{Es}
                    v_cndmask_b32_e64 v{Es}, v6, v{Es}, s[44:45]
                    v_cndmask_b32_e64 v{Os}, v7, v{Os}, s[44:45]""")
                else:
                    a(f"v_add_f32 v{Os}, v7, v{Es}\nv_sub_f32 v{Es}, v7, v{Es}")
            for arr in range(4):
                for d in range(4): a(f"v_cvt_pk_bf16_f32 v{XB+4*arr+d}, v{A+8*arr+2*d}, v{A+8*arr+2*d+1}")
            for arr in range(4):
                for cs in range(2): a(f"{M16} {vr(Y+8*arr+4*cs,4)}, {vr(HC+4*cs,4)}, {vr(XB+4*arr,4)}, 0")
            for arr in range(4):
                for i in range(4):
                    t = 224+4*(arr & 1)+i
                    a(f"v_cvt_pk_bf16_f32 v{t}, v{Y+8*arr+i}, v{Y+8*arr+4+i}")
                    a(f"ds_write_b32 v5, v{t} offset:{5120*i+1280*arr+256*(u0+u)}")
        a("s_branch A1_OUT")
    a("s_cmp_ge_u32 s16, 4\ns_cbranch_scc1 A1_B")
    group(0)
    a("A1_B:")
    group(1)
    a(f"""A1_OUT:
    s_mul_i32 s24, s16, 10240
    s_lshr_b32 s25, s16, 2
    s_lshl_b32 s25, s25, 16
    s_add_u32 s24, s24, s25
    s_lshl_b32 s25, s16, 2
    s_and_b32 s25, s25, 8
    s_add_u32 s24, s24, s25
    v_lshl_add_u32 v5, v0, 4, s24
    s_mul_i32 s24, s16, {2*163840}
    s_mul_i32 s25, s17, 10240
    s_add_u32 s24, s24, s25
    s_mul_i32 s25, s18, 1280
    s_add_u32 s24, s24, s25
    s_add_u32 s25, s24, 163840
    s_movk_i32 s26, 1280""")
    for jj in range(5):
        a(f"""v_add_u32 v6, {64*jj}, v0
        v_mul_u32_u24 v7, 205, v6
        v_lshrrev_b32 v7, 14, v7
        v_lshlrev_b32 v6, 4, v6
        v_mad_u32_u24 v{10+jj}, v7, s26, v6""")
    for q in range(1, 10): a(f"v_add_u32 v{20+q}, {1024*q}, v5")
    a("s_waitcnt lgkmcnt(0)\ns_barrier")
    for q in range(10): a(f"ds_read2_b64 {vr(64+4*q,4)}, v{5 if q == 0 else 20+q} offset1:1")
    for q in range(10):
        a(f"s_waitcnt lgkmcnt({9-q})")
        a(f"buffer_store_dwordx4 {vr(64+4*q,4)}, v{10+q%5}, s[32:35], s{24+q//5} offen")

def build(verbose=False):
    ref = open(f"cdna_kernels/{NAME}.s.ref").read().split("\n")
    hdr = [l for l in ref if l.startswith(";") and "@launch" not in l and "Override launch" not in l and "grid=ceil" not in l]
    out = "\n".join(hdr) + "\n"
    out += "; @launch kernel=k1_kernel grid=(256,1,1) block=(512,1,1) lds=163840\n"
    out += "; @launch kernel=k2_kernel grid=(240,1,1) block=(256,1,1) lds=98304\n"
    out += '.amdgcn_target "amdgcn-amd-amdhsa--gfx950"\n.text\n'
    for k in (k1, k2):
        a = Asm(); k(a); out += a.text(verbose)
        print(k.__name__, "instructions", len(a.L), "nop states", a.nops, file=sys.stderr)
    out += kdesc("k1_kernel", 256) + kdesc("k2_kernel", 256)
    return out
if __name__ == "__main__":
    dst = sys.argv[1] if len(sys.argv) > 1 else f"cdna_kernels/{NAME}.s"
    open(dst, "w").write(build("-v" in sys.argv))
```

```python
import sys, math, struct
from asmlib import *
NAME = "concat_heads__spectral_fnet__sliding_local_dilated__prompt"
OWS = 2621440
OOB = 0x40000000
def f32(x): return "0x%08x" % struct.unpack("<I", struct.pack("<f", x))[0]
def srd(a, d, base, size, add=0):
    if add:
        a(f"s_add_u32 s{d}, s{base}, {add}\ns_addc_u32 s{d+1}, s{base+1}, 0")
    else:
        a(f"s_mov_b32 s{d}, s{base}\ns_mov_b32 s{d+1}, s{base+1}")
    a(f"s_mov_b32 s{d+2}, {size}\ns_mov_b32 s{d+3}, 0x20000")
M32 = "v_mfma_f32_32x32x16_bf16"; M16 = "v_mfma_f32_16x16x32_bf16"
SEL_LO, SEL_HI = "0x05040100", "0x07060302"

STAMP = False
OPT = dict(pfd=4, pf0=(1,2,3), nt1='', rot=1, cpf=1, nt2='', k2pf=1, x='')
def stamp(a, i):
    if STAMP: a(f"s_memtime s[{64+2*i}:{65+2*i}]")
def stamp0(a):
    if STAMP: a("s_memrealtime s[60:61]\ns_memtime s[64:65]")
def finish(a, kern, wsreg):
    if STAMP:
        a(f"""s_waitcnt vmcnt(0)
        s_memtime s[78:79]
        s_memrealtime s[62:63]
        s_add_u32 s84, s{wsreg}, {(16+kern)<<20}
        s_addc_u32 s85, s{wsreg+1}, 0
        s_mov_b32 s86, 0x100000
        s_mov_b32 s87, 0x20000
        s_lshl_b32 s88, s2, 3
        s_add_u32 s88, s88, s16
        s_lshl_b32 s88, s88, 6
        s_waitcnt lgkmcnt(0)
        v_mov_b32 v0, s60
        v_mov_b32 v1, s62""")
        for i in range(8): a(f"v_mov_b32 v{2+i}, s{64+2*i}")
        a("""v_mov_b32 v12, 0
        s_mov_b64 exec, 1
        buffer_store_dwordx4 v[0:3], v12, s[84:87], s88 offen
        buffer_store_dwordx4 v[4:7], v12, s[84:87], s88 offen offset:16
        buffer_store_dwordx2 v[8:9], v12, s[84:87], s88 offen offset:32""")
    a("s_endpgm")
def head(a, name):
    a(f".globl {name}\n.p2align 8\n.type {name},@function\n{name}:")

def k2(a):
    head(a, "k2_kernel")
    stamp0(a)
    a("""s_cmp_ge_u32 s2, 240
    s_cbranch_scc1 K2_END
    s_load_dwordx4 s[4:7], s[0:1], 8
    s_load_dwordx4 s[8:11], s[0:1], 56
    s_load_dwordx2 s[12:13], s[0:1], 80
    v_lshrrev_b32 v1, 6, v0
    v_and_b32 v0, 63, v0
    s_and_b32 s14, s2, 7
    s_lshr_b32 s15, s2, 3
    v_readfirstlane_b32 s16, v1
    s_cmp_ge_u32 s15, 20
    s_cbranch_scc1 A2""")
    b2(a)
    a2(a)
    a("K2_END:\ns_endpgm")

def b2(a):
    OF, ACC, WF = 64, 16, 224
    a(f"""s_mul_i32 s17, s15, 52
    s_lshr_b32 s17, s17, 8
    s_mul_i32 s18, s17, 5
    s_sub_u32 s18, s15, s18
    s_mov_b32 s40, s18
    s_lshr_b32 s19, s14, 1
    s_lshl_b32 s19, s19, 2
    s_add_u32 s17, s17, s19
    s_and_b32 s19, s14, 1
    s_mul_i32 s19, s19, 5
    s_add_u32 s18, s18, s19
    s_lshl_b32 s20, s17, 2
    s_add_u32 s20, s20, s16
    s_mul_i32 s20, s20, 40960
    v_lshlrev_b32 v2, 4, v0
    v_lshrrev_b32 v4, 3, v0
    v_mul_u32_u24 v3, 1280, v4
    v_and_b32 v5, 7, v0
    v_lshrrev_b32 v6, 2, v0
    v_and_b32 v6, 4, v6
    v_xor_b32 v6, v5, v6
    v_lshl_add_u32 v3, v6, 4, v3
    s_mul_i32 s21, s16, 20480
    s_lshl_b32 s19, s18, 7
    s_add_u32 s21, s21, s19
    s_add_u32 s22, s21, 9216
    s_lshl_b32 s23, s16, 11
    s_waitcnt lgkmcnt(0)""")
    stamp(a, 1)
    srd(a, 24, 8, 819200); srd(a, 28, 12, OWS); srd(a, 32, 10, 5242880)
    if OPT['rot']:
        a("""s_lshl_b32 s39, s40, 1
        s_mul_i32 s41, s39, 81920
        s_add_u32 s21, s21, s41
        s_add_u32 s22, s22, s41
        s_lshl_b32 s41, s39, 12
        s_add_u32 s20, s20, s41""")
    def issue(st):
        L = [f"s_add_u32 m0, s23, {8192*st}\nbuffer_load_dwordx4 v3, s[24:27], s21 offen {OPT['nt2']} lds",
             f"buffer_load_dwordx4 v3, s[24:27], s22 offen offset:1024 {OPT['nt2']} lds"]
        L += [f"buffer_load_dwordx4 {vr(OF+16*st+4*q,4)}, v2, s[28:31], s20 offen offset:{1024*q}" for q in range(4)]
        if OPT['rot']:
            L[-1] += f"""
            s_add_u32 s39, s39, 1
            s_cmp_eq_u32 s39, 10
            s_cselect_b32 s41, 819200, 0
            s_cselect_b32 s42, 40960, 0
            s_sub_u32 s41, 81920, s41
            s_sub_u32 s42, 4096, s42
            s_add_u32 s21, s21, s41
            s_add_u32 s22, s22, s41
            s_add_u32 s20, s20, s42"""
        else: L[-1] += "\ns_add_u32 s21, s21, 81920\ns_add_u32 s22, s22, 81920\ns_add_u32 s20, s20, 4096"
        return L
    for st in range(2):
        for x in issue(st): a(x)
    a(f"""v_lshrrev_b32 v7, 5, v0
    v_lshlrev_b32 v7, 10, v7
    v_bfe_u32 v8, v0, 2, 2
    v_lshl_add_u32 v7, v8, 7, v7
    v_lshrrev_b32 v8, 1, v8
    v_lshl_add_u32 v7, v8, 6, v7
    v_bfe_u32 v8, v0, 4, 1
    v_lshl_add_u32 v7, v8, 5, v7
    v_and_b32 v8, 3, v0
    v_lshl_add_u32 v7, v8, 3, v7
    v_xor_b32 v8, 64, v7""")
    a(f"""s_lshl_b32 s36, s16, 12
    s_add_u32 s36, s36, 81920
    v_and_b32 v12, 31, v0
    v_lshlrev_b32 v9, 7, v12
    v_and_b32 v13, 7, v0
    v_lshl_add_u32 v9, v13, 4, v9
    v_lshrrev_b32 v13, 5, v0
    v_lshl_add_u32 v9, v13, 3, v9
    v_add_u32 v9, s36, v9
    v_xor_b32 v10, v5, v4
    v_lshlrev_b32 v10, 4, v10
    v_lshl_add_u32 v10, v4, 7, v10
    v_add_u32 v10, s36, v10
    v_mul_u32_u24 v11, 5120, v4
    v_lshl_add_u32 v11, v5, 4, v11
    s_and_b32 s37, s17, 7
    s_lshl_b32 s37, s37, 2
    s_add_u32 s37, s37, s16
    s_mul_i32 s37, s37, {32*5120}
    s_lshr_b32 s38, s17, 3
    s_mul_i32 s38, s38, 2560
    s_add_u32 s37, s37, s38
    s_lshl_b32 s38, s18, 7
    s_add_u32 s37, s37, s38
    s_add_u32 s37, s37, 1280""")
    for st in range(10):
        if st == 0: stamp(a, 2)
        a(f"s_waitcnt vmcnt({6 if st < 9 else 0})\ns_barrier")
        nxt = issue(st+2) if st < 8 else []
        if st in (0, 5, 9): stamp(a, {0: 3, 5: 4, 9: 5}[st])
        if st == 8: a("v_add_u32 v7, 0x10000, v7\nv_add_u32 v8, 0x10000, v8")
        for q in range(4):
            off = (2048*(4*st+q)) & 0xffff
            for ct in range(2):
                for rho in range(2):
                    a(f"ds_read_b64_tr_b16 {vr(WF+8*q+4*ct+2*rho,2)}, v{7+ct} offset:{off+512*rho}")
        for q in range(4):
            for ct in range(2):
                a(f"s_waitcnt lgkmcnt({14-4*q-2*ct})")
                c = "0" if (st == 0 and q == 0) else vr(ACC+16*ct,16)
                a(f"{M32} {vr(ACC+16*ct,16)}, {vr(WF+8*q+4*ct,4)}, {vr(OF+16*st+4*q,4)}, {c}")
                if nxt: a(nxt.pop(0))
    T = 64
    stamp(a, 6)
    for ct in range(2):
        for j in range(4):
            r = ACC+16*ct+4*j; t = T+2*(4*ct+j)
            a(f"v_cvt_pk_bf16_f32 v{t}, v{r}, v{r+1}\nv_cvt_pk_bf16_f32 v{t+1}, v{r+2}, v{r+3}")
            if ct or j: a(f"v_xor_b32 v12, {16*(4*ct+j)}, v9")
            a(f"ds_write_b64 {'v12' if (ct or j) else 'v9'}, {vr(t,2)}")
    a("s_waitcnt lgkmcnt(0)")
    for q in range(4): a(f"ds_read_b128 {vr(96+4*q,4)}, v10 offset:{1024*q}")
    for q in range(4):
        a(f"s_waitcnt lgkmcnt({3-q})")
        a(f"buffer_store_dwordx4 {vr(96+4*q,4)}, v11, s[32:35], s37 offen")
        if q < 3: a(f"s_add_u32 s37, s37, {8*5120}")
    finish(a, 1, 12)

def a2(a):
    GA, GB, ACC, RAW, F = 16, 48, 80, 144, 176
    a(f"""A2:
    s_sub_u32 s15, s15, 20
    s_cmp_ge_u32 s15, 5
    s_cselect_b32 s17, 1, 0
    s_cselect_b32 s18, 5, 0
    s_sub_u32 s18, s15, s18
    s_lshl_b32 s14, s14, 1
    s_add_u32 s17, s17, s14
    v_lshrrev_b32 v4, 3, v0
    v_and_b32 v5, 7, v0
    v_lshrrev_b32 v6, 4, v0
    v_xor_b32 v2, v5, v6
    v_lshlrev_b32 v2, 4, v2
    v_lshl_add_u32 v2, v4, 17, v2
    v_xor_b32 v3, 64, v2
    v_add_u32 v3, 0x100000, v3
    s_lshl_b32 s19, s16, 21
    s_lshl_b32 s20, s17, 12
    s_add_u32 s20, s20, s19
    s_lshl_b32 s23, s16, 11
    s_lshl_b32 s21, s18, 2
    s_add_u32 s21, s21, s16
    s_lshl_b32 s21, s21, 5
    v_and_b32 v7, 31, v0
    v_add_u32 v8, s21, v7
    v_sub_u32 v9, 640, v8
    v_min_u32 v8, v8, v9
    s_movk_i32 s22, 160
    v_cmp_lt_u32 vcc, s22, v8
    v_sub_u32 v9, 480, v8
    v_cndmask_b32 v9, v8, v9, vcc
    v_add_u32 v10, 320, v9
    v_cmp_eq_u32 vcc, s22, v8
    v_mov_b32 v11, 320
    v_mov_b32 v12, 480
    v_cndmask_b32 v9, v9, v11, vcc
    v_cndmask_b32 v10, v10, v12, vcc
    v_lshrrev_b32 v12, 5, v0
    v_mul_u32_u24 v13, 81920, v12
    v_lshl_add_u32 v9, v9, 4, v13
    v_lshl_add_u32 v10, v10, 4, v13
    v_cmp_eq_u32 vcc, 0, v8
    v_cmp_eq_u32 s[40:41], v11, v8
    s_or_b64 vcc, vcc, s[40:41]
    v_mov_b32 v13, {OOB}
    v_cndmask_b32 v10, v10, v13, vcc
    s_cmp_ge_u32 s21, 320
    s_cselect_b32 s42, 0x80008000, 0
    s_mul_i32 s22, s17, 163840
    s_waitcnt lgkmcnt(0)""")
    stamp(a, 1)
    srd(a, 24, 4, 8388608); srd(a, 28, 6, 8388608); srd(a, 32, 10, 5242880); srd(a, 36, 12, OWS, add=OWS)
    def dft(reg, soff):
        for q in range(2):
            a(f"s_add_u32 m0, s23, {8192*(reg+q)}")
            a(f"buffer_load_dwordx4 v2, s[{24+4*q}:{27+4*q}], {soff} offen lds")
            a(f"s_add_u32 m0, s23, {8192*(reg+q)+1024}")
            a(f"buffer_load_dwordx4 v3, s[{24+4*q}:{27+4*q}], {soff} offen lds")
    dft(0, "s20")
    a("s_cmp_lg_u32 s17, 0\ns_cbranch_scc1 A2_G")
    a("s_add_u32 s20, s19, 65536")
    dft(2, "s20")
    a("A2_G:")
    for k in range(8):
        a(f"buffer_load_dwordx4 {vr(GA+4*k,4)}, v9, s[36:39], s22 offen")
        a(f"buffer_load_dwordx4 {vr(GB+4*k,4)}, v10, s[36:39], s22 offen")
        if k < 7: a("s_add_u32 s22, s22, 10240")
    a(f"""s_cmp_lg_u32 s17, 0
    s_cselect_b32 s43, 1, 2
    s_cselect_b32 s44, 0, 24576
    s_cselect_b32 s45, 0x80008000, 0
    s_cselect_b32 s46, 1.0, 0
    s_cselect_b32 s47, -1.0, 0
    s_lshl_b32 s43, s43, 13
    s_mov_b32 s48, {SEL_LO}
    s_mov_b32 s49, {SEL_HI}
    v_bfe_u32 v13, v0, 1, 3
    v_lshlrev_b32 v14, 2, v12
    v_xor_b32 v13, v13, v14
    v_lshlrev_b32 v13, 4, v13
    v_lshl_add_u32 v13, v7, 7, v13
    v_lshlrev_b32 v9, 8, v7
    v_and_b32 v14, 15, v0
    v_lshlrev_b32 v15, 4, v14
    s_lshl_b32 s50, s16, 6
    v_xor_b32 v15, s50, v15
    v_add_u32 v9, v9, v15
    v_lshl_add_u32 v9, v12, 3, v9
    v_add_u32 v9, 0x8000, v9
    v_xor_b32 v10, v14, v6
    v_lshlrev_b32 v10, 4, v10
    v_lshl_add_u32 v10, v6, 8, v10
    s_lshl_b32 s50, s16, 13
    s_add_u32 s50, s50, 0x8000
    v_add_u32 v10, s50, v10
    s_sub_u32 s50, 2048, s17
    s_cmp_lg_u32 s17, 0
    s_cselect_b32 s50, s50, 16
    s_cselect_b32 s51, -32, 32
    s_cmp_ge_u32 s16, 2
    s_cselect_b32 s50, s50, s17
    s_cselect_b32 s51, s51, 32
    s_and_b32 s52, s16, 1
    s_lshl_b32 s52, s52, 5
    v_add_u32 v11, s52, v6
    v_mul_i32_i24 v11, s51, v11
    v_add_u32 v11, s50, v11
    v_mul_u32_u24 v11, 2560, v11
    v_lshl_add_u32 v11, v14, 4, v11
    s_mul_i32 s51, s51, 10240
    s_lshl_b32 s52, s18, 8
    s_cmp_lg_u32 s17, 0
    s_cbranch_scc1 A2_GO
    s_waitcnt vmcnt(0)""")
    for r in range(32):
        a(f"v_xor_b32 v{GB+r}, s42, v{GB+r}")
        a(f"v_perm_b32 v14, v{GB+r}, v{GA+r}, s49")
        a(f"v_perm_b32 v{GA+r}, v{GB+r}, v{GA+r}, s48")
        a(f"v_mov_b32 v{GB+r}, v14")
    a("s_mov_b32 s42, 0\nA2_GO:")
    stamp(a, 2)
    a("s_waitcnt vmcnt(16)\ns_barrier")
    stamp(a, 3)
    def reads(step):
        kp, tau = step >> 1, step & 1; R = RAW + 16*(step & 1)
        if tau == 0:
            a(f"v_xor_b32 v2, {16*kp}, v13\nv_add_u32 v3, s43, v2\nv_add_u32 v8, s44, v2")
        a(f"ds_read_b128 {vr(R,4)}, v2 offset:{4096*tau}")
        a(f"ds_read_b128 {vr(R+4,4)}, v2 offset:{4096*tau+8192}")
        a(f"ds_read_b128 {vr(R+8,4)}, v3 offset:{4096*tau}")
        a(f"ds_read_b128 {vr(R+12,4)}, v8 offset:{4096*tau}")
    reads(0)
    for step in range(8):
        kp, tau = step >> 1, step & 1; R = RAW + 16*(step & 1)
        if step < 7: reads(step+1)
        if tau == 0:
            a(f"s_waitcnt vmcnt({12-4*kp})")
            for r in range(8): a(f"v_xor_b32 v{GB+8*kp+r}, s42, v{GB+8*kp+r}")
        a(f"s_waitcnt lgkmcnt({4 if step < 7 else 0})")
        for d in range(4):
            a(f"v_perm_b32 v{F+2*d}, v{R+4+d}, v{R+d}, s48\nv_perm_b32 v{F+2*d+1}, v{R+4+d}, v{R+d}, s49")
        for d in range(4): a(f"v_xor_b32 v{R+8+d}, s45, v{R+8+d}")
        for kk in range(2):
            c = "0" if (kp == 0 and kk == 0) else vr(ACC+16*tau,16)
            a(f"{M32} {vr(ACC+16*tau,16)}, {vr(GA+8*kp+4*kk,4)}, {vr(F+4*kk,4)}, {c}")
        for d in range(4):
            a(f"v_perm_b32 v{F+8+2*d}, v{R+12+d}, v{R+8+d}, s48\nv_perm_b32 v{F+8+2*d+1}, v{R+12+d}, v{R+8+d}, s49")
        for kk in range(2):
            c = "0" if (kp == 0 and kk == 0) else vr(ACC+32+16*tau,16)
            a(f"{M32} {vr(ACC+32+16*tau,16)}, {vr(GB+8*kp+4*kk,4)}, {vr(F+8+4*kk,4)}, {c}")
    stamp(a, 5)
    for tau in range(2):
        for j in range(4):
            p = ACC+16*tau+4*j; q = p+32; t = 16+12*((4*tau+j) & 1)
            for i in range(4): a(f"v_fma_f32 v{t+i}, s47, v{q+i}, v{p+i}")
            for i in range(4): a(f"v_fma_f32 v{t+4+i}, s46, v{p+i}, v{q+i}")
            a(f"v_cvt_pk_bf16_f32 v{t+8}, v{t}, v{t+1}\nv_cvt_pk_bf16_f32 v{t+9}, v{t+2}, v{t+3}")
            a(f"v_cvt_pk_bf16_f32 v{t+10}, v{t+4}, v{t+5}\nv_cvt_pk_bf16_f32 v{t+11}, v{t+6}, v{t+7}")
            a(f"v_xor_b32 v12, {16*j}, v9")
            a(f"ds_write_b64 v12, {vr(t+8,2)} offset:{8192*tau}")
            a(f"ds_write_b64 v12, {vr(t+10,2)} offset:{8192*tau+16384}")
    a("s_waitcnt lgkmcnt(0)\ns_barrier")
    stamp(a, 6)
    for q in range(8):
        a(f"v_xor_b32 v12, {64*(q & 3)}, v10")
        a(f"ds_read_b128 {vr(48+4*q,4)}, v12 offset:{1024*q}")
    for q in range(8):
        a(f"s_waitcnt lgkmcnt({7-q})")
        a(f"buffer_store_dwordx4 {vr(48+4*q,4)}, v11, s[32:35], s52 offen")
        if q < 7: a("v_add_u32 v11, s51, v11")
    finish(a, 1, 12)

def code_prefetch(a, start, nbytes, waves, tag):
    if not OPT['cpf']: return 0
    a(f"s_getpc_b64 s[56:57]\n{tag}_PC:\ns_sub_u32 s56, s56, {tag}_PC-{start}\ns_subb_u32 s57, s57, 0\nv_lshlrev_b32 v250, 7, v0")
    n = (nbytes + waves*8192 - 1)//(waves*8192)
    for q in range(n):
        a(f"global_load_dword v251, v250, s[56:57]")
        if q < n-1: a(f"v_add_u32 v250, {waves*8192}, v250")
    return n

def k1(a):
    head(a, "k1_kernel")
    stamp0(a)
    a("""s_cmp_ge_u32 s2, 256
    s_cbranch_scc1 K1_END
    s_load_dwordx2 s[4:5], s[0:1], 0
    s_load_dwordx4 s[8:11], s[0:1], 24
    s_load_dwordx4 s[12:15], s[0:1], 40
    s_load_dwordx2 s[6:7], s[0:1], 80""")
    if OPT['cpf']:
        a("v_cmp_gt_u32 vcc, (K1_END-k1_kernel+127)/128, v0\ns_and_saveexec_b64 s[54:55], vcc\ns_cbranch_execz K1_NOPF")
        code_prefetch(a, "k1_kernel", 1, 8, "K1")
        a("K1_NOPF:\ns_mov_b64 exec, s[54:55]")
    a("""v_lshrrev_b32 v1, 6, v0
    v_and_b32 v0, 63, v0
    s_and_b32 s17, s2, 7
    s_lshr_b32 s18, s2, 3
    v_readfirstlane_b32 s16, v1
    s_cmp_ge_u32 s18, 28
    s_cbranch_scc1 A1""")
    b1(a)
    a1(a)
    a("K1_END:\ns_endpgm")

assert all((l*2185) >> 16 == l//30 for l in range(1920)) and all((c*26) >> 8 == c//10 for c in range(30))
assert all((q*205) >> 14 == q//80 for q in range(320))
assert all((q*4370) >> 16 == q//15 for q in range(1010)) and all((q*52) >> 8 == q//5 for q in range(20))
STG = 122880
def b1(a):
    ACC, X0, W0 = 64, 104, 144
    NT = OPT['nt1']; PFD = OPT['pfd']
    a(f"""s_lshr_b32 s19, s17, 1
    s_mul_i32 s19, s19, 7
    s_lshr_b32 s24, s18, 2
    s_add_u32 s19, s19, s24
    s_and_b32 s43, s17, 1
    s_lshl_b32 s24, s43, 2
    s_mov_b32 s44, s18
    s_and_b32 s18, s18, 3
    s_mov_b32 s45, s18
    s_add_u32 s18, s18, s24
    s_cmp_ge_u32 s19, 14
    s_cselect_b32 s17, 1, 0
    s_cselect_b32 s24, 14, 0
    s_sub_u32 s19, s19, s24
    s_mul_i32 s19, s19, 73
    s_mul_i32 s25, s16, 5120
    s_mov_b32 s27, s25
    s_mov_b32 s26, 0
    v_mov_b32 v8, {OOB}
    s_cmp_ge_u32 s16, 2
    s_cbranch_scc1 B1_W""")
    def d1(jj): return f"s_add_u32 m0, s27, {1024*jj}\nbuffer_load_dwordx4 v{10+jj}, s[20:23], s26 offen {NT} lds"
    def pf0():
        for t in OPT['pf0']: a(f"s_mul_i32 s46, s24, {t}\nbuffer_load_dword v251, v9, s[20:23], s46 offen {NT}")
    a(f"""s_mul_i32 s24, s16, 40
    s_add_u32 s46, s24, s19
    s_lshl_b32 s46, s46, 1
    s_add_u32 s46, s46, s17
    s_mul_i32 s46, s46, 1280
    v_lshrrev_b32 v2, 3, v0
    v_mul_u32_u24 v2, 2560, v2
    v_add_u32 v2, s46, v2
    s_lshl_b32 s24, s16, 2
    v_lshrrev_b32 v3, 4, v0
    v_xor_b32 v3, s24, v3
    v_and_b32 v4, 7, v0
    v_xor_b32 v3, v3, v4
    v_lshl_add_u32 v10, v3, 4, v2
    v_xor_b32 v3, 64, v10""")
    for jj in range(1, 5): a(f"v_add_u32 v{10+jj}, {20480*jj}, v{3 if jj & 1 else 10}")
    a(f"""s_mul_i32 s46, s45, 20
    s_mul_i32 s24, s16, 10
    s_add_u32 s46, s46, s24
    s_add_u32 s46, s46, s19
    s_lshl_b32 s46, s46, 1
    s_add_u32 s46, s46, s17
    s_mul_i32 s46, s46, 1280
    v_mul_u32_u24 v9, 2560, v0
    v_add_u32 v9, s46, v9
    v_cmp_gt_u32 vcc, 10, v0
    v_cndmask_b32 v9, v8, v9, vcc
    s_movk_i32 s24, 128
    s_waitcnt lgkmcnt(0)""")
    srd(a, 20, 12, OWS)
    stamp(a, 1)
    pf0()
    for jj in range(5): a(d1(jj))
    a(f"""s_branch B1_GO
    B1_W:
    s_sub_u32 s46, s16, 2
    s_mul_i32 s47, s44, 36
    s_mul_i32 s48, s46, 6
    s_add_u32 s47, s47, s48
    v_add_u32 v2, s47, v0
    v_mul_u32_u24 v3, 4370, v2
    v_lshrrev_b32 v3, 16, v3
    v_mul_u32_u24 v4, 15, v3
    v_sub_u32 v4, v2, v4
    v_mul_u32_u24 v5, 52, v4
    v_lshrrev_b32 v5, 8, v5
    v_add_u32 v5, s43, v5
    v_mul_u32_u24 v5, 640, v5
    v_lshl_add_u32 v5, v4, 7, v5
    v_mul_u32_u24 v3, 3840, v3
    v_add_u32 v9, v3, v5
    v_cmp_gt_u32 vcc, 6, v0
    v_cndmask_b32 v9, v8, v9, vcc
    v_cmp_gt_u32 vcc, 960, v2
    v_cndmask_b32 v9, v8, v9, vcc
    s_mul_i32 s46, s46, 320
    s_mul_i32 s47, s18, 160
    s_movk_i32 s48, 1120
    s_mov_b32 s24, 245760""")
    for jj in range(5):
        a(f"""v_add_u32 v2, s46, v0
        v_mul_u32_u24 v3, 2185, v2
        v_lshrrev_b32 v3, 16, v3
        v_mul_u32_u24 v4, 30, v3
        v_sub_u32 v4, v2, v4
        v_mul_u32_u24 v5, 26, v4
        v_lshrrev_b32 v5, 8, v5
        v_lshl_add_u32 v4, v4, 4, s47
        v_mad_u32_u24 v4, v5, s48, v4
        v_and_b32 v5, 35, v3
        v_bfe_u32 v6, v3, 2, 2
        v_lshl_add_u32 v5, v6, 3, v5
        v_bfe_u32 v6, v3, 4, 1
        v_lshl_add_u32 v5, v6, 2, v5
        v_mul_u32_u24 v5, 3840, v5
        v_add_u32 v{10+jj}, v4, v5""")
        if jj == 0:
            a("s_waitcnt lgkmcnt(0)"); srd(a, 20, 14, 2457600); stamp(a, 1)
            a("s_mov_b32 s49, s46"); pf0(); a("s_mov_b32 s46, s49")
        a(d1(jj))
        if jj < 4: a("s_add_u32 s46, s46, 64")
    a("B1_GO:\ns_add_u32 s27, s27, 40960\ns_mov_b32 s26, s24")
    for jj in range(5): a(d1(jj))
    a(f"""s_add_u32 s27, s27, 40960
    s_lshl_b32 s26, s24, 1
    s_mul_i32 s46, s24, {PFD}
    s_mul_i32 s47, s24, 10
    s_add_u32 s48, s25, 122880""")
    a(f"""v_and_b32 v2, 15, v0
    v_lshrrev_b32 v3, 4, v0
    v_lshrrev_b32 v4, 1, v2
    v_xor_b32 v4, v4, v3
    v_lshlrev_b32 v4, 4, v4
    v_lshl_add_u32 v15, v2, 7, v4
    v_xor_b32 v16, 64, v15
    v_lshrrev_b32 v4, 2, v0
    v_mul_u32_u24 v17, 480, v4
    v_and_b32 v5, 3, v0
    v_lshl_add_u32 v17, v5, 3, v17
    s_lshl_b32 s28, s16, 6
    v_add_u32 v17, s28, v17""")
    for r in range(40): a(f"v_mov_b32 v{ACC+r}, 0")
    srd(a, 32, 6, OWS)
    BP, BC, B0, ONE, OA = 32, 36, 40, 44, 48
    a(f"""v_mul_u32_u24 v21, 496, v2
    v_lshl_add_u32 v22, v3, 3, v21
    s_add_u32 s28, s28, {STG}
    v_add_u32 v23, s28, v22
    v_mov_b32 v4, 0
    v_mov_b32 v5, 0
    s_and_b32 s28, s16, 3
    s_lshr_b32 s29, s16, 2
    s_mul_i32 s30, s28, 40
    s_mul_i32 s31, s29, 7936
    s_add_u32 s31, s31, {STG}
    s_add_u32 s30, s30, s31
    v_add_u32 v24, s30, v22
    v_add_u32 v27, {160-7936}, v24
    v_cmp_eq_u32 vcc, 0, v3
    v_add_u32 v6, s31, v21
    v_add_u32 v6, 480, v6
    v_add_u32 v7, 32, v24
    v_cndmask_b32 v25, v6, v7, vcc
    v_add_u32 v6, -7936, v6
    v_add_u32 v7, 32, v27
    v_cndmask_b32 v26, v6, v7, vcc
    v_lshrrev_b32 v6, 2, v0
    v_mul_u32_u24 v6, 496, v6
    v_and_b32 v7, 3, v0
    v_lshl_add_u32 v6, v7, 3, v6
    s_add_u32 s30, s30, {320-7936}
    v_add_u32 v28, s30, v6
    v_lshlrev_b32 v6, 2, v3
    v_sub_u32 v6, v6, v2
    v_mov_b32 v7, {f32(-1e30)}""")
    for i in range(4):
        a(f"v_cmp_le_i32 vcc, {9-i}, v6\nv_add_u32 v21, {7+i}, v6\nv_mov_b32 v{ONE+i}, 0x3f803f80\nv_cndmask_b32 v{BP+i}, v7, v4, vcc")
        a(f"v_cmp_ge_u32 vcc, 7, v21\nv_cndmask_b32 v{BC+i}, v7, v4, vcc")
    a("s_cmp_eq_u32 s29, 0\ns_cselect_b64 vcc, -1, 0")
    for i in range(4): a(f"v_cndmask_b32 v{B0+i}, v{BP+i}, v7, vcc")
    a(f"""s_lshl_b32 s30, s29, 4
    s_add_u32 s30, s30, s19
    v_add_u32 v29, s30, v2
    s_mul_i32 s31, s28, 5
    v_add_u32 v6, s31, v3
    v_lshrrev_b32 v7, 1, v6
    v_lshlrev_b32 v7, 9, v7
    v_and_b32 v6, 1, v6
    v_lshl_add_u32 v30, v6, 3, v7
    s_add_u32 s31, s31, 4
    s_lshr_b32 s30, s31, 1
    s_lshl_b32 s30, s30, 9
    s_and_b32 s31, s31, 1
    s_lshl_b32 s31, s31, 3
    s_add_u32 s30, s30, s31
    v_mov_b32 v31, s30
    v_cmp_eq_u32 vcc, 0, v3
    v_cndmask_b32 v31, v8, v31, vcc
    s_mul_i32 s38, s17, {32*40960}
    s_mul_i32 s30, s18, 5120
    s_add_u32 s38, s38, s30
    s_add_u32 s39, s19, 7
    s_cmp_eq_u32 s19, 0
    s_cselect_b32 s39, 0, s39
    s_mov_b32 s40, {f32(20**-0.5*math.log2(math.e))}
    s_mov_b32 s41, 40960
    s_movk_i32 s42, 1024""")
    for j in range(3):
        a(f"""v_add_u32 v6, {32*j}, v29
        v_lshrrev_b32 v7, 5, v6
        v_and_b32 v21, 31, v6
        v_lshlrev_b32 v21, 4, v21
        v_mad_u32_u24 v7, v7, s41, v21
        v_cmp_le_u32 vcc, s39, v6
        v_cmp_gt_u32 s[36:37], s42, v6
        s_and_b64 vcc, vcc, s[36:37]
        v_cndmask_b32 v7, v8, v7, vcc
        v_add_u32 v{OA+2*j}, v7, v30
        v_add_u32 v{OA+2*j+1}, v7, v31""")
    a("s_cmp_lg_u32 s16, 7\ns_cbranch_scc1 B1_NOPAD\ns_mov_b32 exec_hi, 0")
    for t in range(5): a(f"ds_write_b64 v23, v[4:5] offset:{7936*t+32}")
    a("s_mov_b32 exec_hi, -1\nB1_NOPAD:")
    X = OPT['x']
    def rd(kk):
        if 'r' in X: return
        for ct in range(2):
            for be in range(2):
                if 't' not in X: a(f"ds_read_b64_tr_b16 {vr(W0+8*kk+4*ct+2*be,2)}, v20 offset:{10240+(32*kk+16*be)*480+32*ct}")
        for t in range(5):
            if 'b' not in X: a(f"ds_read_b128 {vr(X0+20*kk+4*t,4)}, v{18+kk} offset:{2048*t}")
    def mm(kk, ins={}):
        n = 0
        for t in range(5):
            for ct in range(2):
                c = vr(ACC+20*ct+4*t,4)
                if 'm' not in X: a(f"{M16} {c}, {vr(W0+8*kk+4*ct,4)}, {vr(X0+20*kk+4*t,4)}, {c}")
                n += 1
                if n in ins and 'd' not in X: a(ins[n])
    pf = f"buffer_load_dword v251, v9, s[20:23], s46 offen {NT}" if PFD else None
    NV = 6 if PFD else 5
    a("s_mov_b32 s28, 0\ns_mov_b32 s30, 40960\nv_mov_b32 v18, v15\nv_mov_b32 v19, v16\nv_mov_b32 v20, v17")
    stamp(a, 2)
    a("s_waitcnt vmcnt(5)\ns_barrier")
    stamp(a, 3)
    rd(0)
    if pf: a(pf)
    a(d1(0)); a(d1(1))
    a("s_branch B1_MID\nB1_LOOP:")
    rd(0)
    ins = {3: d1(0), 7: d1(1)}
    if pf: ins[1] = pf
    mm(1, ins)
    a("B1_MID:")
    rd(1)
    a("s_waitcnt lgkmcnt(9)")
    mm(0, {2: d1(2), 5: d1(3), 8: d1(4)})
    a(f"""s_add_u32 s27, s27, 40960
    s_cmp_eq_u32 s27, s48
    s_cselect_b32 s27, s25, s27
    s_add_u32 s26, s26, s24
    s_cmp_ge_u32 s26, s47
    s_cselect_b32 s26, {OOB}, s26""")
    if pf: a(f"s_add_u32 s46, s46, s24\ns_cmp_ge_u32 s46, s47\ns_cselect_b32 s46, {OOB}, s46")
    a(f"""s_waitcnt lgkmcnt(0)
    v_add_u32 v18, s30, v15
    v_add_u32 v19, s30, v16
    v_add_u32 v20, s30, v17
    s_add_u32 s30, s30, 40960
    s_cmp_eq_u32 s30, 122880
    s_cselect_b32 s30, 0, s30
    s_add_u32 s28, s28, 1
    s_cmp_eq_u32 s28, 10
    s_cbranch_scc1 B1_DONE
    s_waitcnt vmcnt({NV})
    s_barrier
    s_branch B1_LOOP
    B1_DONE:""")
    mm(1)
    stamp(a, 4)
    for ct in range(2):
        if ct == 1: a("s_cmp_eq_u32 s16, 7\ns_cbranch_scc1 B1_ATT")
        for t in range(5):
            r = ACC+20*ct+4*t; d = X0+2*(5*ct+t)
            a(f"v_cvt_pk_bf16_f32 v{d}, v{r}, v{r+1}\nv_cvt_pk_bf16_f32 v{d+1}, v{r+2}, v{r+3}")
            a(f"ds_write_b64 v23, {vr(d,2)} offset:{7936*t+32*ct}")
    a("B1_ATT:\ns_waitcnt lgkmcnt(0)\ns_barrier")
    stamp(a, 5)
    def item_regs(j):
        b = 64 + 40*j
        return dict(Q=b, K=b+4, V=b+12, S=b+20, P=b+28, M=b+32, T=b+33, O=b+4, R=b+36)
    def st_load(j):
        r = item_regs(j); o = 15872*j
        a(f"ds_read_b64 {vr(r['Q'],2)}, v24 offset:{o}\nds_read_b64 {vr(r['Q']+2,2)}, v25 offset:{o}")
        for t in range(2):
            a(f"ds_read_b64 {vr(r['K']+4*t,2)}, v27 offset:{o+7936*t}\nds_read_b64 {vr(r['K']+4*t+2,2)}, v26 offset:{o+7936*t}")
    def st_loadv(j):
        r = item_regs(j); o = 15872*j
        for dt in range(2):
            for t in range(2): a(f"ds_read_b64_tr_b16 {vr(r['V']+4*dt+2*t,2)}, v28 offset:{o+7936*t+32*dt}")
    def st_qk(j):
        r = item_regs(j)
        a(f"{M16} {vr(r['S'],4)}, {vr(r['K'],4)}, {vr(r['Q'],4)}, {vr(B0 if j == 0 else BP,4)}")
        a(f"{M16} {vr(r['S']+4,4)}, {vr(r['K']+4,4)}, {vr(r['Q'],4)}, {vr(BC,4)}")
    def steps_soft(j):
        r = item_regs(j); S, M, T, P = r['S'], r['M'], r['T'], r['P']
        L = [f"v_max3_f32 v{M}, v{S}, v{S+1}, v{S+2}", f"v_max3_f32 v{T}, v{S+3}, v{S+4}, v{S+5}", f"v_max3_f32 v{M}, v{M}, v{S+6}, v{S+7}",
             f"v_max_f32 v{M}, v{M}, v{T}", f"v_mov_b32 v{T}, v{M}", f"v_permlane16_swap_b32 v{M}, v{T}", f"v_max_f32 v{M}, v{M}, v{T}",
             f"v_mov_b32 v{T}, v{M}", f"v_permlane32_swap_b32 v{M}, v{T}", f"v_max_f32 v{M}, v{M}, v{T}", f"v_mul_f32 v{M}, s40, v{M}"]
        L += [f"v_fma_f32 v{S+i}, v{S+i}, s40, -v{M}" for i in range(8)]
        L += [f"v_exp_f32 v{S+i}, v{S+i}" for i in range(8)]
        L += [f"v_cvt_pk_bf16_f32 v{P+i}, v{S+2*i}, v{S+2*i+1}" for i in range(4)]
        return L
    def st_pv(j):
        r = item_regs(j)
        a(f"{M16} {vr(r['S'],4)}, {vr(ONE,4)}, {vr(r['P'],4)}, 0")
        for dt in range(2): a(f"{M16} {vr(r['O']+4*dt,4)}, {vr(r['V']+4*dt,4)}, {vr(r['P'],4)}, 0")
    def steps_out(j):
        r = item_regs(j); O, R = r['O'], r['R']
        L = [f"v_rcp_f32 v{r['M']}, v{r['S']}"]
        L += [f"v_mul_f32 v{O+i}, v{O+i}, v{r['M']}" for i in range(4)]
        L += [f"v_cvt_pk_bf16_f32 v{R+i}, v{O+2*i}, v{O+2*i+1}" for i in range(2)]
        L += [f"buffer_store_dwordx2 {vr(R,2)}, v{OA+2*j}, s[32:35], s38 offen"]
        L += [f"v_mul_f32 v{O+i}, v{O+i}, v{r['M']}" for i in range(4, 8)]
        L += [f"v_cvt_pk_bf16_f32 v{R+i}, v{O+2*i}, v{O+2*i+1}" for i in range(2, 4)]
        L += [f"buffer_store_dwordx2 {vr(R+2,2)}, v{OA+2*j+1}, s[32:35], s38 offen"]
        return L
    def interleave(lists):
        for row in range(max(map(len, lists))):
            for l in lists:
                if row < len(l): a(l[row])
    def att(js):
        for j in js: st_load(j)
        for n, j in enumerate(js):
            a(f"s_waitcnt lgkmcnt({min(15, 6*(len(js)-1-n) + 4*n)})")
            st_qk(j); st_loadv(j)
        interleave([steps_soft(j) for j in js])
        a("s_waitcnt lgkmcnt(0)")
        for j in js: st_pv(j)
        interleave([steps_out(j) for j in js])
    a("s_cmp_eq_u32 s29, 0\ns_cbranch_scc1 B1_ATT3")
    att([0, 1]); stamp(a, 6); finish(a, 0, 6); a("B1_ATT3:")
    att([0, 1, 2]); stamp(a, 6); finish(a, 0, 6)

def a1(a):
    SLOT = 53248
    ACC, RAW, EV, DF = 56, 152, 168, 200
    HC, TW = 40, 48
    NT = OPT['nt1']
    a(f"""A1:
    s_sub_u32 s18, s18, 28
    s_lshr_b32 s19, s18, 1
    s_lshl_b32 s17, s17, 1
    s_add_u32 s17, s17, s19
    s_and_b32 s18, s18, 1
    s_and_b32 s19, s16, 3
    v_lshrrev_b32 v2, 3, v0
    v_lshrrev_b32 v3, 4, v0
    v_and_b32 v4, 7, v0""")
    a(f"""s_lshl_b32 s24, s17, 2
    s_add_u32 s24, s24, s19
    s_mul_i32 s24, s24, 1280
    s_lshr_b32 s25, s16, 2
    s_lshl_b32 s25, s25, 7
    s_add_u32 s24, s24, s25
    v_mul_u32_u24 v5, 81920, v2
    v_add_u32 v5, s24, v5
    v_lshrrev_b32 v6, 5, v0
    v_lshlrev_b32 v6, 2, v6
    v_and_b32 v7, 1, v3
    v_lshl_add_u32 v6, v7, 1, v6
    v_xor_b32 v6, v6, v4
    v_lshl_add_u32 v10, v6, 4, v5
    v_xor_b32 v6, 80, v10
    v_add_u32 v11, {8*81920}, v6
    v_add_u32 v12, {16*81920}, v10
    v_add_u32 v13, {24*81920}, v6""")
    a(f"""v_mul_u32_u24 v5, 2560, v2
    v_xor_b32 v6, v3, v4
    v_lshl_add_u32 v14, v6, 4, v5
    s_mul_i32 s25, s18, {80*2560}
    v_add_u32 v14, s25, v14
    s_lshl_b32 s40, s16, 12
    s_mov_b32 s37, 0
    s_mov_b32 s38, 0
    s_waitcnt lgkmcnt(0)""")
    srd(a, 20, 4, OWS)
    a("s_and_b32 s24, s16, 1\ns_cmp_eq_u32 s24, 0\ns_cselect_b32 s28, s8, s10\ns_cselect_b32 s29, s9, s11\ns_mov_b32 s30, 819200\ns_mov_b32 s31, 0x20000")
    stamp(a, 1)
    def dx(jj): return f"s_add_u32 m0, s40, {1024*jj}\nbuffer_load_dwordx4 v{10+jj}, s[20:23], s37 offen {NT} lds"
    for jj in range(4): a(dx(jj))
    def common_setup():
        srd(a, 32, 6, OWS, add=OWS)
        a(f"""v_and_b32 v2, 15, v0
        v_bfe_u32 v5, v0, 3, 1
        v_bfe_u32 v6, v0, 2, 1
        v_xor_b32 v6, v6, v5
        v_lshl_add_u32 v5, v6, 2, v5
        v_and_b32 v6, 2, v0
        v_add_u32 v5, v5, v6
        v_lshlrev_b32 v6, 1, v3
        v_xor_b32 v5, v5, v6
        v_lshlrev_b32 v5, 4, v5
        v_lshl_add_u32 v17, v2, 7, v5
        s_lshl_b32 s24, s19, 12
        v_add_u32 v17, s24, v17
        v_xor_b32 v18, 16, v17
        v_lshrrev_b32 v5, 1, v2
        v_xor_b32 v5, v5, v3
        v_lshlrev_b32 v5, 4, v5
        v_lshl_add_u32 v19, v2, 7, v5
        v_xor_b32 v20, 64, v19
        s_mov_b32 s48, {SEL_LO}
        s_mov_b32 s49, {SEL_HI}""")
        a(f"v_lshlrev_b32 v5, 2, v3\nv_cmp_eq_u32 vcc, 0, v2\ns_mov_b32 s24, {f32(1/32)}")
        for be in range(2):
            for i in range(4):
                a(f"""v_add_u32 v6, {16*be+i}, v5
                v_mul_u32_u24 v6, v6, v2
                v_and_b32 v6, 31, v6
                v_cvt_f32_u32 v6, v6
                v_mul_f32 v6, s24, v6
                v_cos_f32 v{26+(i&1)}, v6
                v_sin_f32 v{28+(i&1)}, v6""")
                a(f"v_cndmask_b32_e64 v{28+(i&1)}, v{28+(i&1)}, {'-1.0' if i&1 else '1.0'}, vcc")
                if i & 1:
                    a(f"v_cvt_pk_bf16_f32 v{HC+2*be+(i>>1)}, v26, v27\nv_cvt_pk_bf16_f32 v{HC+4+2*be+(i>>1)}, v28, v29")
        a(f"""v_mul_u32_u24 v5, 20480, v3
        v_and_b32 v6, 1, v3
        v_lshl_add_u32 v5, v6, 3, v5
        v_lshrrev_b32 v6, 1, v3
        v_lshl_add_u32 v5, v6, 16, v5
        v_lshl_add_u32 v5, v2, 4, v5
        s_lshl_b32 s24, s19, 2
        v_add_u32 v5, s24, v5""")
    def group(G):
        nu = 3 if G == 0 else 2; u0 = 0 if G == 0 else 3; nd = 2 if G == 0 else 3; nv = 4+nd; n = f"A1{'AB'[G]}"
        if G == 0:
            a(f"""s_lshr_b32 s24, s16, 1
            s_mul_i32 s24, s24, {16*2560}
            v_add_u32 v14, s24, v14
            v_xor_b32 v15, 64, v14
            v_add_u32 v15, {8*2560}, v15
            s_lshl_b32 s41, s16, 11
            s_add_u32 s41, s41, 32768""")
            dl = [0, 1024]
        else:
            a(f"""s_lshr_b32 s24, s19, 1
            s_lshl_b32 s25, s24, 6
            v_xor_b32 v14, s25, v14
            s_mul_i32 s25, s24, {8*2560}
            s_add_u32 s25, s25, {32*2560}
            v_add_u32 v14, s25, v14
            v_add_u32 v15, {16*2560}, v14
            v_add_u32 v16, {32*2560}, v14
            s_and_b32 s41, s19, 1
            s_lshl_b32 s41, s41, 1
            s_add_u32 s41, s41, s24
            s_lshl_b32 s41, s41, 10
            s_add_u32 s41, s41, {32768+8192}""")
            dl = [0, 4096, 8192]
        def dm(q): return f"s_add_u32 m0, s41, {dl[q]}\nbuffer_load_dwordx4 v{14+q}, s[28:31], s38 offen {NT} lds"
        def adv(d): return f"s_add_u32 s40, s40, {d}\ns_add_u32 s41, s41, {d}\ns_add_u32 s37, s37, 256\ns_add_u32 s38, s38, 128"
        for q in range(nd): a(dm(q))
        a(adv(SLOT))
        for jj in range(4): a(dx(jj))
        for q in range(nd): a(dm(q))
        a(adv(SLOT))
        common_setup()
        a(f"s_mul_i32 s24, s18, 80\ns_add_u32 s24, s24, {16*u0}\ns_mov_b32 s25, {f32(1/640)}")
        for u in range(nu):
            a(f"""v_add_u32 v6, s24, v2
            v_cvt_f32_u32 v6, v6
            v_mul_f32 v6, s25, v6
            v_cos_f32 v{TW+2*u}, v6
            v_sin_f32 v{TW+2*u+1}, v6
            s_add_u32 s24, s24, 16""")
        for r in range(32*nu): a(f"v_mov_b32 v{ACC+r}, 0")
        if G == 0:
            a(f"""v_cmp_eq_u32 vcc, 0, v2
            s_cmp_eq_u32 s18, 0
            s_cselect_b64 s[44:45], vcc, 0
            s_lshl_b32 s24, s18, 4
            s_add_u32 s24, s24, s16
            s_cmp_eq_u32 s24, 1
            s_cselect_b32 s46, 1, 0
            v_lshlrev_b32 v8, 2, v0
            v_add_u32 v8, {32768+2048}, v8
            v_mov_b32 v9, 0xbf803f80""")
        cnt = [0]
        def fix():
            if G: return
            cnt[0] += 1
            a(f"""s_cmp_eq_u32 s46, 0
            s_cbranch_scc1 {n}_NOFIX{cnt[0]}
            v_add_u32 v25, s43, v8
            s_mov_b32 exec_hi, 0
            ds_write_b32 v25, v9
            s_mov_b32 exec_hi, -1
            s_waitcnt lgkmcnt(0)
            {n}_NOFIX{cnt[0]}:""")
        def bases(): a("v_add_u32 v21, s43, v17\nv_add_u32 v22, s43, v18\nv_add_u32 v23, s43, v19\nv_add_u32 v24, s43, v20")
        def rd(kl):
            for mt in range(2):
                for b in range(2): a(f"ds_read_b128 {vr(RAW+8*mt+4*b,4)}, v{21+b} offset:{16384*kl+2048*mt}")
            for u in range(nu):
                for cs in range(2): a(f"ds_read_b128 {vr(DF+24*kl+8*u+4*cs,4)}, v{23+kl} offset:{32768+4096*(u0+u)+2048*cs}")
        def perms(kl):
            L = []
            for mt in range(2):
                for d in range(4):
                    L.append(f"v_perm_b32 v{EV+16*kl+8*mt+d}, v{RAW+8*mt+2*d+1}, v{RAW+8*mt+2*d}, s48")
                    L.append(f"v_perm_b32 v{EV+16*kl+8*mt+4+d}, v{RAW+8*mt+2*d+1}, v{RAW+8*mt+2*d}, s49")
            return L
        def guarded(x):
            cnt[0] += 1
            return f"s_cbranch_vccz {n}_SK{cnt[0]}\n{x}\n{n}_SK{cnt[0]}:"
        def mm(kl, fill=None, dmas=()):
            k = 0; fill = list(fill or []); dmas = list(dmas); tot = 8*nu; first = 5 if G == 0 else 3
            for u in range(nu):
                for cs in range(2):
                    for eo in range(2):
                        for mt in range(2):
                            c = vr(ACC+32*u+16*cs+8*eo+4*mt,4)
                            a(f"{M16} {c}, {vr(EV+16*kl+8*mt+4*eo,4)}, {vr(DF+24*kl+8*u+4*cs,4)}, {c}")
                            k += 1
                            if dmas and k % 4 == 1: a(guarded(dmas.pop(0)))
                            if fill and k >= first:
                                if k == first: a(f"s_waitcnt lgkmcnt({2*nu})")
                                m = -(-len(fill)//(tot-k+1))
                                for _ in range(m): a(fill.pop(0))
            assert not fill and not dmas
        a("s_mov_b32 s42, 0\ns_mov_b32 s43, 0\ns_mov_b64 vcc, -1")
        bases()
        stamp(a, 2)
        a(f"s_waitcnt vmcnt({nv})")
        fix()
        a("s_barrier")
        stamp(a, 3)
        rd(0)
        for jj in range(4): a(dx(jj))
        a(f"s_waitcnt lgkmcnt({2*nu})")
        for x in perms(0): a(x)
        a(f"s_branch {n}_MID\n{n}_LOOP:")
        rd(0)
        mm(1, perms(0), [dx(jj) for jj in range(4)])
        a(f"{n}_MID:")
        rd(1)
        a(f"s_waitcnt lgkmcnt({4+2*nu})")
        mm(0, perms(1), [dm(q) for q in range(nd)])
        a(f"""s_add_u32 s42, s42, 1
        s_cmp_eq_u32 s42, 5
        s_cbranch_scc1 {n}_DONE
        s_cmp_eq_u32 s42, 1
        s_cselect_b32 s24, {-2*SLOT}, 0
        s_cmp_lg_u32 s42, 1
        s_cselect_b32 s24, {SLOT}, s24
        {adv('s24')}
        s_add_u32 s43, s43, {SLOT}
        s_cmp_eq_u32 s43, {3*SLOT}
        s_cselect_b32 s43, 0, s43
        s_waitcnt lgkmcnt(0)""")
        bases()
        a(f"""s_cmp_lt_u32 s42, 3
        s_cselect_b64 vcc, -1, 0
        s_cmp_lt_u32 s42, 4
        s_cbranch_scc1 {n}_W1
        s_waitcnt vmcnt(0)
        {n}_W1:
        s_waitcnt vmcnt({nv})""")
        fix()
        a(f"s_barrier\ns_branch {n}_LOOP\n{n}_DONE:\ns_waitcnt lgkmcnt(0)")
        mm(1)
        stamp(a, 4)
        XB, Y = 152, 200
        for u in range(nu):
            A = ACC+32*u; c, s = TW+2*u, TW+2*u+1
            for e in range(8):
                Ec, Oc, Es, Os = A+e, A+8+e, A+16+e, A+24+e
                t = 6 + 20*(e & 1)
                a(f"""v_mul_f32 v{t}, v{c}, v{Oc}
                v_mul_f32 v{t+1}, v{s}, v{Oc}
                v_fmac_f32 v{t}, v{s}, v{Os}
                v_fma_f32 v{t+1}, -v{c}, v{Os}, v{t+1}
                v_sub_f32 v{Oc}, v{Ec}, v{t}
                v_add_f32 v{Ec}, v{Ec}, v{t}""")
                if G == 0 and u == 0:
                    a(f"""v_sub_f32 v{t}, v{t+1}, v{Es}
                    v_add_f32 v{t+1}, v{t+1}, v{Es}
                    v_cndmask_b32_e64 v{Es}, v{t}, v{Es}, s[44:45]
                    v_cndmask_b32_e64 v{Os}, v{t+1}, v{Os}, s[44:45]""")
                else:
                    a(f"v_add_f32 v{Os}, v{t+1}, v{Es}\nv_sub_f32 v{Es}, v{t+1}, v{Es}")
            for arr in range(4):
                for d in range(4): a(f"v_cvt_pk_bf16_f32 v{XB+4*arr+d}, v{A+8*arr+2*d}, v{A+8*arr+2*d+1}")
            for arr in range(4):
                for cs in range(2): a(f"{M16} {vr(Y+8*arr+4*cs,4)}, {vr(HC+4*cs,4)}, {vr(XB+4*arr,4)}, 0")
            for arr in range(4):
                for i in range(4):
                    t = 168+4*(arr & 1)+i
                    a(f"v_cvt_pk_bf16_f32 v{t}, v{Y+8*arr+i}, v{Y+8*arr+4+i}")
                    a(f"ds_write_b32 v5, v{t} offset:{5120*i+1280*arr+256*(u0+u)}")
        if G == 0: a("s_branch A1_OUT")
    a("s_cmp_ge_u32 s16, 4\ns_cbranch_scc1 A1_B")
    group(0)
    a("A1_B:")
    group(1)
    a(f"""A1_OUT:
    s_mul_i32 s24, s16, 10240
    s_lshr_b32 s25, s16, 2
    s_lshl_b32 s25, s25, 16
    s_add_u32 s24, s24, s25
    s_lshl_b32 s25, s16, 2
    s_and_b32 s25, s25, 8
    s_add_u32 s24, s24, s25
    v_lshl_add_u32 v5, v0, 4, s24
    s_mul_i32 s24, s16, {2*163840}
    s_mul_i32 s25, s17, 10240
    s_add_u32 s24, s24, s25
    s_mul_i32 s25, s18, 1280
    s_add_u32 s24, s24, s25
    s_add_u32 s25, s24, 163840
    s_movk_i32 s26, 1280""")
    for jj in range(5):
        a(f"""v_add_u32 v6, {64*jj}, v0
        v_mul_u32_u24 v7, 205, v6
        v_lshrrev_b32 v7, 14, v7
        v_lshlrev_b32 v6, 4, v6
        v_mad_u32_u24 v{10+jj}, v7, s26, v6""")
    for q in range(2, 10, 2): a(f"v_add_u32 v{20+q}, {1024*q}, v5")
    stamp(a, 5)
    a("s_waitcnt lgkmcnt(0)\ns_barrier")
    stamp(a, 6)
    for q in range(10): a(f"ds_read2_b64 {vr(64+4*q,4)}, v{5 if q < 2 else 20+(q & ~1)} offset0:{128*(q & 1)} offset1:{128*(q & 1)+1}")
    for q in range(10):
        a(f"s_waitcnt lgkmcnt({9-q})")
        a(f"buffer_store_dwordx4 {vr(64+4*q,4)}, v{10+q%5}, s[32:35], s{24+q//5} offen")
    finish(a, 0, 6)

def build(verbose=False):
    ref = open(f"cdna_kernels/{NAME}.s.ref").read().split("\n")
    hdr = [l for l in ref if l.startswith(";") and "@launch" not in l and "Override launch" not in l and "grid=ceil" not in l]
    out = "\n".join(hdr) + "\n"
    out += "; @launch kernel=k1_kernel grid=(256,1,1) block=(512,1,1) lds=163840\n"
    out += "; @launch kernel=k2_kernel grid=(240,1,1) block=(256,1,1) lds=98304\n"
    out += '.amdgcn_target "amdgcn-amd-amdhsa--gfx950"\n.text\n'
    for k in (k1, k2):
        a = Asm(); k(a); out += a.text(verbose)
        print(k.__name__, "instructions", len(a.L), "nop states", a.nops, file=sys.stderr)
    out += kdesc("k1_kernel", 256) + kdesc("k2_kernel", 256)
    return out
if __name__ == "__main__":
    STAMP = "-s" in sys.argv
    for x in sys.argv[2:]:
        if "=" in x:
            k, v = x.split("=", 1); OPT[k] = eval(v)
    dst = sys.argv[1] if len(sys.argv) > 1 else f"cdna_kernels/{NAME}.s"
    open(dst, "w").write(build("-v" in sys.argv))
```
